```python
import torch

def _softmax(x, axis=-1):
    return torch.softmax(x, dim=axis)
def _gelu(x):
    return torch.nn.functional.gelu(x, approximate="tanh")
def _silu(x):
    return torch.nn.functional.silu(x)
def _sigmoid(x):
    return torch.sigmoid(x)
def _layernorm(x, axis=-1, eps=1e-5):
    m = x.mean(dim=axis, keepdim=True)
    v = x.var(dim=axis, keepdim=True, unbiased=False)
    return (x - m) / torch.sqrt(v + eps)
def _scatter_add(tgt, idx, src, axis=0):
    return tgt.clone().index_add_(axis, idx, src)
def _segment_sum(src, seg, n):
    out = torch.zeros((n,) + src.shape[1:], dtype=src.dtype)
    return out.index_add_(0, seg, src)
def _pad(x, pw):
    flat = tuple(v for pair in reversed(pw) for v in pair)
    return torch.nn.functional.pad(x, flat)

kernel_name = 'sequential_preLN__sliding_block__glu_gated_swiglu__prompt'

def setup_inputs():

    _w = (lambda a: (lambda t: t.to(torch.bfloat16) if t.is_floating_point() else t)(torch.as_tensor(a)))
    def _A_setup():
        B, S, D = 1, 2048, 640
        return {
            "x": _w((lambda *s: torch.randn(*s, dtype=torch.bfloat16) * 0.05)(B, S, D)),
            "wqkv": _w((lambda *s: torch.randn(*s, dtype=torch.bfloat16) * 0.05)(D, 3 * D)),
            "wo": _w((lambda *s: torch.randn(*s, dtype=torch.bfloat16) * 0.05)(D, D)),
        }
    _A_in = _A_setup()

    def _B_setup():
        B, S, D, F = 1, 2048, 640, 1536
        return {
            "x": _w((lambda *s: torch.randn(*s, dtype=torch.bfloat16) * 0.05)(B, S, D)),
            "w1": _w((lambda *s: torch.randn(*s, dtype=torch.bfloat16) * 0.8)(D, F) * (2.0 / D) ** 0.5),
            "w3": _w((lambda *s: torch.randn(*s, dtype=torch.bfloat16) * 0.8)(D, F) * (2.0 / D) ** 0.5),
            "w2": _w((lambda *s: torch.randn(*s, dtype=torch.bfloat16) * 0.8)(F, D) * (2.0 / F) ** 0.5),
        }
    _B_in = _B_setup()

    return {
        "A_x": _A_in["x"],
        "A_wqkv": _A_in["wqkv"],
        "A_wo": _A_in["wo"],
        "B_x": _B_in["x"],
        "B_w1": _B_in["w1"],
        "B_w3": _B_in["w3"],
        "B_w2": _B_in["w2"],
    }

def reference(A_x, A_wqkv, A_wo, B_x, B_w1, B_w3, B_w2):
    def _A_ref(x, wqkv, wo):
        B, S, D = x.shape
        H = 32; Dh = D // H; W = 256
        qkv = (lambda x, *d: x.permute(*d))((x @ wqkv).reshape(B, S, 3, H, Dh), 2, 0, 3, 1, 4)
        q, k, v = qkv[0], qkv[1], qkv[2]
        scores = torch.einsum("bhqd,bhkd->bhqk", q, k) * (Dh ** -0.5)
        idx = torch.arange(S)
        mask = (idx[:, None] - idx[None, :] >= 0) & (idx[:, None] - idx[None, :] < W)
        scores = torch.where(mask[None, None], scores, -1e9)
        p = _softmax(scores, axis=-1)
        o = torch.einsum("bhqk,bhkd->bhqd", p, v)
        return (lambda x, *d: x.permute(*d))(o, 0, 2, 1, 3).reshape(B, S, D) @ wo

    def _B_ref(x, w1, w3, w2):
        gate = torch.einsum("bsd,df->bsf", x, w1)
        up = torch.einsum("bsd,df->bsf", x, w3)
        h = _silu(gate) * up
        out = torch.einsum("bsf,fd->bsd", h, w2)
        return out

    x = A_x
    h = x + _A_ref(_layernorm(x, axis=-1), A_wqkv, A_wo)
    h2 = h + _B_ref(_layernorm(h, axis=-1), B_w1, B_w3, B_w2)
    return h2
```

```python
import re

REG_RE = re.compile(r'^(-|abs\()?([vas])(\d+)\)?$')
RNG_RE = re.compile(r'^(-)?([vas])\[(\d+):(\d+)\]$')

def parse_regs(op):
    op = op.strip()
    m = RNG_RE.match(op)
    if m:
        return {(m.group(2), i) for i in range(int(m.group(3)), int(m.group(4)) + 1)}
    m = REG_RE.match(op)
    if m:
        return {(m.group(2), int(m.group(3)))}
    if op == 'vcc': return {('s', 106), ('s', 107)}
    if op == 'vcc_lo': return {('s', 106)}
    if op == 'vcc_hi': return {('s', 107)}
    if op == 'exec': return {('s', 126), ('s', 127)}
    if op == 'exec_lo': return {('s', 126)}
    if op == 'exec_hi': return {('s', 127)}
    if op == 'm0': return {('s', 124)}
    return set()

TRANS = ('v_exp_f32', 'v_log_f32', 'v_rcp_f32', 'v_rsq_f32', 'v_sqrt_f32', 'v_sin_f32', 'v_cos_f32')
VCC = {('s', 106), ('s', 107)}
EXEC = {('s', 126), ('s', 127)}
M0 = {('s', 124)}

class Ins:
    __slots__ = ('text', 'mn', 'kind', 'rd', 'wr', 'srcA', 'srcB', 'srcC', 'passes', 'label', 'target', 'states', 'stdata', 'dpp', 'lds_dma', 'cmt')
    def __init__(self, text):
        self.text = text; self.rd = set(); self.wr = set(); self.srcA = self.srcB = self.srcC = set()
        self.passes = 0; self.label = None; self.target = None; self.states = 1; self.stdata = set(); self.dpp = False
        self.lds_dma = False
        t = text.split(';')[0].strip()
        if t.endswith(':'):
            self.kind = 'label'; self.label = t[:-1]; self.mn = ''; self.states = 0; return
        if t.startswith('.') or not t:
            self.kind = 'dir'; self.mn = ''; self.states = 0; return
        parts = t.split(None, 1)
        mn = parts[0]; self.mn = mn
        rest = parts[1] if len(parts) > 1 else ''
        ops = []; depth = 0; cur = ''
        for ch in rest:
            if ch == '[': depth += 1
            if ch == ']': depth -= 1
            if ch == ',' and depth == 0: ops.append(cur.strip()); cur = ''
            else: cur += ch
        if cur.strip(): ops.append(cur.strip())
        mods = ''
        if ops:
            lastp = ops[-1].split(None, 1)
            ops[-1] = lastp[0]
            mods = lastp[1] if len(lastp) > 1 else ''
        R = [parse_regs(o) for o in ops]
        if mn.startswith('v_mfma'):
            self.kind = 'mfma'; self.wr = R[0]; self.srcA, self.srcB, self.srcC = R[1], R[2], R[3]
            self.rd = R[1] | R[2] | R[3]
            self.passes = 8 if '32x32' in mn else 4
            assert '32x32x16' in mn or '16x16x32' in mn or '32x32x8' in mn
        elif mn.startswith('v_'):
            self.kind = 'trans' if mn.split('_e')[0] in TRANS or mn in TRANS else 'valu'
            self.dpp = ('row_' in mods or 'quad_perm' in mods or 'wave_' in mods or mn.endswith('_dpp'))
            if mn.startswith('v_permlane') and 'swap' in mn:
                self.kind = 'permlane'; self.wr = R[0] | R[1]; self.rd = R[0] | R[1]
            elif mn.startswith(('v_add_co', 'v_sub_co', 'v_subrev_co')):
                self.wr = R[0] | R[1]; self.rd = set().union(*R[2:])
            elif mn.startswith(('v_addc_co', 'v_subb_co')):
                self.wr = R[0] | R[1]; self.rd = set().union(*R[2:])
            elif mn.startswith('v_cmpx'):
                self.wr = R[0] | EXEC; self.rd = set().union(*R[1:])
            elif mn.startswith(('v_readfirstlane', 'v_readlane')):
                self.kind = 'readlane'; self.wr = R[0]; self.rd = set().union(*R[1:])
            elif mn == 'v_nop':
                pass
            else:
                self.wr = R[0]; self.rd = set().union(*R[1:]) if len(R) > 1 else set()
                if mn.startswith(('v_fmac', 'v_mac', 'v_dot2c', 'v_writelane')) or self.dpp: self.rd |= R[0]
        elif mn.startswith('buffer_') or mn.startswith('global_'):
            self.kind = 'vmem'
            isbuf = mn.startswith('buffer_')
            if 'lds' in mods.split() :
                self.lds_dma = True; self.rd = set().union(*R) | M0
            elif '_load_' in mn:
                self.wr = R[0]; self.rd = set().union(*R[1:])
            elif '_store_' in mn:
                self.rd = set().union(*R)
                self.stdata = R[0] if isbuf else R[1]
            elif '_atomic_' in mn:
                self.rd = set().union(*R)
                if 'sc0' in mods.split(): self.wr = R[0]
            else:
                pass
        elif mn.startswith('ds_'):
            self.kind = 'ds'
            if mn.startswith(('ds_read', 'ds_bpermute', 'ds_permute', 'ds_swizzle')):
                self.wr = R[0]; self.rd = set().union(*R[1:])
            else:
                self.rd = set().union(*R)
        elif mn.startswith(('s_load', 's_memtime', 's_memrealtime', 's_buffer_load')):
            self.kind = 'smem'; self.wr = R[0]; self.rd = set().union(*R[1:]) if len(R) > 1 else set()
        elif mn == 's_nop':
            self.kind = 'nop'; self.states = int(ops[0], 0) + 1
        elif mn in ('s_waitcnt', 's_barrier', 's_endpgm', 's_sleep', 's_setprio'):
            self.kind = 'misc'
        elif mn.startswith(('s_cbranch', 's_branch')):
            self.kind = 'branch'; self.target = ops[0]
            if 'vcc' in mn: self.rd = set(VCC)
            if 'exec' in mn: self.rd = set(EXEC)
        elif mn.startswith(('s_cmp', 's_bitcmp')):
            self.kind = 'salu'; self.rd = set().union(*R)
        elif mn.startswith('s_'):
            self.kind = 'salu'; self.wr = R[0]; self.rd = set().union(*R[1:]) if len(R) > 1 else set()
            if 'saveexec' in mn: self.wr |= EXEC; self.rd |= EXEC
            if mn.startswith(('s_addk', 's_mulk', 's_cmov')): self.rd |= R[0]
        else:
            raise ValueError('unknown instr ' + text)

def isv(regs): return {r for r in regs if r[0] in 'va'}
def iss(regs): return {r for r in regs if r[0] == 's'}
VALUK = ('valu', 'trans', 'permlane', 'readlane')

def need_states(p, c):
    n = 0
    pk, ck = p.kind, c.kind
    if pk == 'mfma':
        D = p.wr
        big = 12 if p.passes == 8 else 8
        if ck == 'mfma':
            if D & (c.srcA | c.srcB): n = max(n, big)
            if D & c.srcC:
                if not (c.srcC == D and c.passes == p.passes): n = max(n, 10 if p.passes == 8 else 6)
            elif D & c.wr:
                n = max(n, 10 if p.passes == 8 else 6)
        elif ck in VALUK or ck in ('vmem', 'ds'):
            if D & (c.rd | c.wr): n = max(n, big)
        if ck in VALUK and (p.srcC & c.wr): n = max(n, 7 if p.passes == 8 else 3)
        if ck in ('vmem', 'ds') and (p.srcC & c.wr): n = max(n, 7 if p.passes == 8 else 3)
    if pk in VALUK:
        vw = isv(p.wr); sw = iss(p.wr)
        if ck == 'mfma' and (vw & c.rd): n = max(n, 2)
        if ck == 'mfma' and (sw & EXEC): n = max(n, 4)
        if ck == 'permlane' and (vw & c.rd): n = max(n, 2)
        if ck == 'permlane' and (sw & EXEC): n = max(n, 4)
        if ck == 'readlane' and (vw & c.rd): n = max(n, 1)
        if ck == 'readlane' and (sw & c.rd): n = max(n, 4)
        if ck == 'readlane' and (sw & EXEC): n = max(n, 4)
        if ck in VALUK and c.dpp and (vw & c.rd): n = max(n, 2)
        if ck in VALUK and c.dpp and (sw & EXEC): n = max(n, 5)
        if ck in VALUK and (sw & c.rd): n = max(n, 2)
        if ck == 'vmem' and (sw & c.rd): n = max(n, 5)
        if pk == 'trans' and ck in ('valu', 'permlane', 'readlane', 'mfma') and (vw & c.rd): n = max(n, 1)
        if ck in ('salu', 'branch', 'smem') and (sw & c.rd): n = max(n, 1)
    if p.mn.startswith('v_dot2'):
        D = p.wr
        if c.mn == p.mn:
            if D & (c.rd - c.wr): n = max(n, 3)
        elif D & (c.rd | c.wr): n = max(n, 3)
    if pk == 'salu':
        if (p.wr & M0) and ck == 'vmem' and c.lds_dma: n = max(n, 1)
    if pk == 'vmem' and len(p.stdata) >= 3:
        if ck in VALUK or ck == 'mfma':
            if p.stdata & c.wr: n = max(n, 2)
        elif p.stdata & c.wr: n = max(n, 1)
    if pk == 'ds' and p.mn.startswith('ds_write') and False:
        pass
    return n

class Asm:
    def __init__(self):
        self.ins = []
        self.vmq = []
        self.lgq = []
        self.auto = True
        self.uid = 0
    def lbl(self, base):
        self.uid += 1; return f"{base}_{self.uid}"
    def raw(self, text):
        self.ins.append(Ins(text))
    def _wait(self, vm=None, lg=None):
        parts = []
        if vm is not None: parts.append(f"vmcnt({min(vm, 63)})")
        if lg is not None: parts.append(f"lgkmcnt({min(lg, 15)})")
        self.ins.append(Ins("s_waitcnt " + " ".join(parts)))
    def __call__(self, text, tag=None):
        for line in text.split('\n'):
            line = line.strip()
            if line: self._one(line, tag)
    def _one(self, text, tag):
        I = Ins(text)
        if self.auto and I.kind not in ('label', 'dir'):
            touched = I.rd | I.wr
            vm = lg = None
            for k in range(len(self.vmq) - 1, -1, -1):
                if self.vmq[k][1] & touched:
                    vm = len(self.vmq) - 1 - k
                    if vm <= 63 or True:
                        keep = min(vm, 63)
                        self.vmq = self.vmq[len(self.vmq) - keep:] if keep else []
                    break
            for k in range(len(self.lgq) - 1, -1, -1):
                if self.lgq[k][1] & touched:
                    lg = len(self.lgq) - 1 - k
                    if any(e[2] for e in self.lgq): lg = 0
                    keep = min(lg, 15)
                    self.lgq = self.lgq[len(self.lgq) - keep:] if keep else []
                    break
            if vm is not None or lg is not None: self._wait(vm, lg)
        if I.mn == 's_waitcnt':
            m = re.search(r'vmcnt\((\d+)\)', text)
            if m:
                n = int(m.group(1)); self.vmq = self.vmq[len(self.vmq) - n:] if n and n < len(self.vmq) else ([] if n == 0 else self.vmq)
            m = re.search(r'lgkmcnt\((\d+)\)', text)
            if m:
                n = int(m.group(1)); self.lgq = self.lgq[len(self.lgq) - n:] if n and n < len(self.lgq) else ([] if n == 0 else self.lgq)
        self.ins.append(I)
        if I.kind == 'vmem': self.vmq.append((tag, set(I.wr)))
        elif I.kind == 'ds': self.lgq.append((tag, set(I.wr), False))
        elif I.kind == 'smem': self.lgq.append((tag, set(I.wr), True))
    def wait_vm_tag(self, tag):
        for k in range(len(self.vmq) - 1, -1, -1):
            if self.vmq[k][0] == tag:
                self(f"s_waitcnt vmcnt({min(len(self.vmq) - 1 - k, 63)})")
                return
    def wait_all(self):
        self("s_waitcnt vmcnt(0) lgkmcnt(0)")
    def wait_lg(self):
        if self.lgq: self("s_waitcnt lgkmcnt(0)")

    def finalize(self):
        ins = self.ins
        changed = True
        rounds = 0
        while changed:
            changed = False; rounds += 1
            labels = {I.label: i for i, I in enumerate(ins) if I.kind == 'label'}
            branches = {}
            for i, I in enumerate(ins):
                if I.kind == 'branch': branches.setdefault(I.target, []).append(i)
            out = []
            for i, c in enumerate(ins):
                if c.kind in ('label', 'dir', 'nop', 'misc'):
                    out.append(c); continue
                need = 0
                stack = [(i - 1, 0)]
                seen = set()
                while stack:
                    j, dist = stack.pop()
                    while j >= 0 and dist < 12:
                        if (j, dist) in seen: break
                        seen.add((j, dist))
                        p = ins[j]
                        if p.kind == 'label':
                            for b in branches.get(p.label, []):
                                stack.append((b, dist))
                            j -= 1
                            if j >= 0 and ins[j].mn in ('s_branch', 's_endpgm'): break
                            continue
                        if p.kind != 'dir':
                            n = need_states(p, c)
                            if n - dist > need: need = n - dist
                            dist += p.states
                        j -= 1
                if need > 0:
                    out.append(Ins(f"s_nop {need - 1}")); changed = True
                out.append(c)
            ins = out
            assert rounds < 10
        self.ins = ins
    def text(self):
        return "\n".join((I.text if I.kind in ('label', 'dir') else "  " + I.text) for I in self.ins) + "\n"
```

```python
import sys, os, math, struct
sys.path.insert(0, os.path.dirname(os.path.abspath(__file__)))
from emit import Asm

NAME = "sequential_preLN__sliding_block__glu_gated_swiglu__prompt_kernel"

WS_EPOCH = 0x8000
WS_NM = 0x10000
WS_RS = 0x12000
WS_QKV = 0x100000; QKV_RB = 240 * 512
WS_O = 0x900000; OH_RB = 80 * 512
WS_H = 0xC00000
WS_G = 0x1000000; G_RB = 192 * 512
WS_ST2 = 0x1600000
WS_W3F = 0x1700000
WS_W4F = 0x1800000
WS_W5F = 0x1C00000
WS_TS = 0x1F00000
WS_SIZE = 0x10000000
TAGC = 0x5bd1e995

L_PREP = 131072
KVT = 2576
L_K = 0
L_V = 12 * KVT
L_S3 = (77824, 120832)
L_H = (0, 81920)
L_S5 = (0, 43008)
RED_W = 10752
RED_R = 336

def f32(x): return struct.unpack('<I', struct.pack('<f', x))[0]
LOG2E = 1.4426950408889634

sW = 3
SX, SWQ, SWS, SOUT, SP1, SP2 = 24, 28, 32, 36, 40, 44
sE, sEH = 48, 49
sG, sJ, sRB, sCB = 50, 51, 52, 53
sFLAG = 54
sT = list(range(55, 64))
SM = 64
sU = list(range(96, 102))
sF = list(range(4, 22))

def srd(b): return f"s[{b}:{b+3}]"
def vr(b, n=1): return f"v{b}" if n == 1 else f"v[{b}:{b+n-1}]"
def ar(b, n=1): return f"a{b}" if n == 1 else f"a[{b}:{b+n-1}]"

class VA:
    def __init__(self, lo, hi):
        self.free = [True] * 256
        for i in range(256):
            if i < lo or i >= hi: self.free[i] = False
        self.names = {}
    def alloc(self, name, n=1, align=None):
        if align is None: align = 4 if n >= 4 else (2 if n >= 2 else 1)
        for b in range(0, 256 - n + 1, align):
            if all(self.free[b:b + n]):
                for i in range(b, b + n): self.free[i] = False
                assert name not in self.names, name
                self.names[name] = (b, n)
                return b
        raise RuntimeError(f"out of VGPRs for {name} ({n}); live: {self.names}")
    def rel(self, *names):
        for name in names:
            b, n = self.names.pop(name)
            for i in range(b, b + n): self.free[i] = True

class Gen:
    def __init__(self, stop=99, ts=False, map1='row'):
        self.a = Asm(); self.stop = stop; self.ts = ts; self.map1 = map1
        self.V = VA(1, 255 if ts else 256)
        self.fill = []; self.acc_cost = 0; self.fill_period = 80
        self.nts = 0

    def stamp(self, name=''):
        if not self.ts: return
        a = self.a
        a(f"s_memtime s[100:101]")
        a("s_waitcnt lgkmcnt(0)")
        a(f"v_writelane_b32 v255, s100, {self.nts}")
        self.tsnames = getattr(self, 'tsnames', []); self.tsnames.append(name)
        self.nts += 1

    def tick(self, cost):
        self.acc_cost += cost
        while self.fill and self.acc_cost >= self.fill_period:
            self.acc_cost -= self.fill_period
            self.fill.pop(0)()
    def drain_fill(self, n=10**9):
        while self.fill and n > 0:
            self.fill.pop(0)(); n -= 1

    def emit_costed(self, text):
        self.a(text)
        mn = text.split()[0]
        c = 8 if mn.startswith(('v_mfma', 'v_exp', 'v_rcp', 'v_rsq')) else 4
        self.tick(c)

    def interleave(self, valu, mf, lead=0):
        cost = [8 if t.split()[0].startswith(('v_exp', 'v_rcp', 'v_rsq')) else 4 for t in valu]
        tot = sum(cost); n = len(mf); k = 0; cum = 0
        for t, c in zip(valu, cost):
            while k < n and cum >= (k * tot) / n - lead:
                for x in mf[k]: self.emit_costed(x)
                k += 1
            self.emit_costed(t); cum += c
        while k < n:
            for x in mf[k]: self.emit_costed(x)
            k += 1

    def flag(self, stage):
        a = self.a; F = self.vF
        a("s_waitcnt vmcnt(0)")
        a(f"s_add_u32 s{sU[0]}, s{sE}, {stage}")
        a(f"v_mov_b32 v{F}, s{sU[0]}")
        a("s_mov_b64 exec, 1")
        a(f"buffer_store_dwordx2 {vr(F,2)}, off, {srd(SWS)}, s{sFLAG} sc1")
        a("s_mov_b64 exec, -1")

    def poll(self, vaddr, stage):
        a = self.a; P = self.vP
        L = a.lbl("L_poll"); D = a.lbl("L_pdone")
        a("s_waitcnt vmcnt(0) lgkmcnt(0)")
        a(f"s_add_u32 s{sU[0]}, s{sE}, {stage}")
        a(f"s_mov_b32 s{sU[1]}, 0")
        a(f"{L}:")
        a(f"buffer_load_dwordx2 {vr(P,2)}, v{vaddr}, {srd(SWS)}, 0 offen sc1")
        a(f"s_add_u32 s{sU[1]}, s{sU[1]}, 1")
        a("s_waitcnt vmcnt(0)")
        a(f"v_subrev_u32 v{P}, s{sU[0]}, v{P}")
        a(f"v_xor_b32 v{P+1}, s{sEH}, v{P+1}")
        a(f"v_lshrrev_b32 v{P}, 3, v{P}")
        a(f"v_or_b32 v{P}, v{P}, v{P+1}")
        a(f"v_cmp_ne_u32 vcc, 0, v{P}")
        a(f"s_cbranch_vccz {D}")
        a(f"s_cmp_lt_u32 s{sU[1]}, 0x8000")
        a(f"s_cbranch_scc1 {L}")
        a(f"{D}:")

    def wg_of_p1(self, vd, vrb, vcb, vt):
        a = self.a
        if self.map1 == 'row':
            a(f"v_lshrrev_b32 v{vd}, 1, v{vrb}")
            a(f"v_and_b32 v{vt}, 1, v{vrb}")
            a(f"v_lshl_or_b32 v{vd}, v{vt}, 3, v{vd}")
            a(f"v_lshl_or_b32 v{vd}, v{vcb}, 4, v{vd}")
        else:
            a(f"v_lshrrev_b32 v{vd}, 2, v{vrb}")
            a(f"v_lshrrev_b32 v{vt}, 3, v{vcb}")
            a(f"v_lshl_or_b32 v{vd}, v{vt}, 2, v{vd}")
            a(f"v_and_b32 v{vt}, 3, v{vrb}")
            a(f"v_lshl_or_b32 v{vd}, v{vt}, 3, v{vd}")
            a(f"v_and_b32 v{vt}, 7, v{vcb}")
            a(f"v_lshl_or_b32 v{vd}, v{vt}, 5, v{vd}")

    def finish(self):
        a = self.a
        a("s_branch L_finish")

    def prologue(self):
        a = self.a; V = self.V
        a("s_cmp_ge_u32 s2, 256")
        a("s_cbranch_scc1 L_end")
        a("s_load_dwordx16 s[4:19], s[0:1], 0")
        a("s_load_dwordx4 s[20:23], s[0:1], 64")
        if self.ts:
            a("v_mov_b32 v255, 0")
        t = [V.alloc(f"t{i}") for i in range(6)]; self.t = t
        self.vF = V.alloc("vF", 2); self.vP = V.alloc("vP", 2)
        a(f"v_lshrrev_b32 v{t[0]}, 6, v0")
        a("v_and_b32 v0, 63, v0")
        a(f"v_readfirstlane_b32 s{sW}, v{t[0]}")
        a(f"s_and_b32 s{sG}, s2, 7"); a(f"s_lshl_b32 s{sG}, s{sG}, 1")
        a(f"s_bfe_u32 s{sT[0]}, s2, 0x10003"); a(f"s_add_u32 s{sG}, s{sG}, s{sT[0]}")
        a(f"s_lshr_b32 s{sJ}, s2, 4")
        if self.map1 == 'row':
            a(f"s_mov_b32 s{sRB}, s{sG}"); a(f"s_mov_b32 s{sCB}, s{sJ}")
        else:
            a(f"s_and_b32 s{sRB}, s2, 3"); a(f"s_lshl_b32 s{sRB}, s{sRB}, 2")
            a(f"s_bfe_u32 s{sT[0]}, s2, 0x20003"); a(f"s_add_u32 s{sRB}, s{sRB}, s{sT[0]}")
            a(f"s_bfe_u32 s{sCB}, s2, 0x10002"); a(f"s_lshl_b32 s{sCB}, s{sCB}, 3")
            a(f"s_lshr_b32 s{sT[0]}, s2, 5"); a(f"s_add_u32 s{sCB}, s{sCB}, s{sT[0]}")
        a(f"s_lshl_b32 s{sFLAG}, s2, 7"); a(f"s_lshl_b32 s{sT[0]}, s{sW}, 3"); a(f"s_add_u32 s{sFLAG}, s{sFLAG}, s{sT[0]}")
        self.vL15 = V.alloc("l15"); self.vG4 = V.alloc("g4"); self.vL16 = V.alloc("l16")
        a(f"v_and_b32 v{self.vL15}, 15, v0"); a(f"v_lshrrev_b32 v{self.vG4}, 4, v0"); a(f"v_lshlrev_b32 v{self.vL16}, 4, v0")
        DA = V.alloc("DA", 4); DB = V.alloc("DB", 4); self.DA, self.DB = DA, DB
        wv = t[0]
        a(f"v_lshrrev_b32 v{t[1]}, 3, v0"); a(f"v_lshl_add_u32 v{t[1]}, v{wv}, 5, v{t[1]}")
        a(f"v_mul_u32_u24 v{t[1]}, 1280, v{t[1]}")
        a(f"v_and_b32 v{t[2]}, 7, v0"); a(f"v_xor_b32 v{t[2]}, v{t[2]}, v{self.vG4}")
        a(f"v_lshl_add_u32 v{DA}, v{t[2]}, 4, v{t[1]}")
        a(f"v_xor_b32 v{t[2]}, 4, v{t[2]}")
        a(f"v_lshl_add_u32 v{DA+1}, v{t[2]}, 4, v{t[1]}")
        a(f"v_add_u32 v{DA+2}, {16*1280 - 2048}, v{DA}")
        a(f"v_add_u32 v{DA+3}, {24*1280 - 3072}, v{DA+1}")
        a(f"v_add_u32 v{DA+1}, {8*1280 - 1024}, v{DA+1}")
        a(f"v_lshl_add_u32 v{t[1]}, v{wv}, 4, v{self.vG4}")
        a(f"v_mul_u32_u24 v{t[1]}, 3840, v{t[1]}")
        a(f"v_and_b32 v{t[3]}, 1, v0"); a(f"v_lshl_add_u32 v{t[1]}, v{t[3]}, 4, v{t[1]}")
        a(f"v_lshrrev_b32 v{t[2]}, 1, v{self.vL15}"); a(f"v_xor_b32 v{t[2]}, v{t[2]}, v{self.vG4}")
        a(f"v_lshl_add_u32 v{DB}, v{t[2]}, 5, v{t[1]}")
        a(f"v_xor_b32 v{t[2]}, 4, v{t[2]}")
        a(f"v_lshl_add_u32 v{DB+2}, v{t[2]}, 5, v{t[1]}")
        a(f"v_add_u32 v{DB+1}, {4*3840 - 1024}, v{DB}")
        a(f"v_add_u32 v{DB+3}, {12*3840 - 3072}, v{DB+2}")
        a(f"v_add_u32 v{DB+2}, {8*3840 - 2048}, v{DB+2}")
        sK, sOA, sOB, sSW = sT[1], sT[2], sT[3], sT[4]
        self.sK, self.sOA, self.sOB, self.sSW = sK, sOA, sOB, sSW
        a(f"s_add_u32 s{sK}, s{sRB}, s{sCB}"); a(f"s_mul_i32 s{sT[0]}, s{sK}, 26"); a(f"s_lshr_b32 s{sT[0]}, s{sT[0]}, 8")
        a(f"s_mul_i32 s{sT[0]}, s{sT[0]}, 10"); a(f"s_sub_u32 s{sK}, s{sK}, s{sT[0]}")
        a(f"s_mul_i32 s{sOA}, s{sRB}, {128*1280}"); a(f"s_lshl_b32 s{sT[0]}, s{sK}, 7"); a(f"s_add_u32 s{sOA}, s{sOA}, s{sT[0]}")
        a(f"s_mul_i32 s{sOB}, s{sK}, {64*3840}"); a(f"s_lshl_b32 s{sT[0]}, s{sCB}, 8"); a(f"s_add_u32 s{sOB}, s{sOB}, s{sT[0]}")
        a(f"s_lshl_b32 s{sSW}, s{sW}, 12")
        a("s_waitcnt lgkmcnt(0)")
        def mk(d, p, n):
            a(f"s_mov_b32 s{d}, s{p}"); a(f"s_mov_b32 s{d+1}, s{p+1}"); a(f"s_mov_b32 s{d+2}, {n}"); a(f"s_mov_b32 s{d+3}, 0x20000")
        self.mk = mk
        mk(SX, 4, 2048 * 1280); mk(SWQ, 6, 640 * 3840)
        a(f"s_cmp_eq_u32 s{sCB}, 15")
        a("s_cbranch_scc1 L_nodma")
        for s in range(3): self.p1_dma()
        a("L_nodma:")
        a(f"s_load_dwordx2 s[{sE}:{sEH}], s[22:23], {WS_EPOCH}")
        mk(SWS, 22, WS_SIZE); mk(SOUT, 18, 2048 * 1280)
        a("s_getpc_b64 s[96:97]")
        a(f"s_lshr_b32 s{sT[0]}, s2, 3"); a(f"s_lshl_b32 s{sT[0]}, s{sT[0]}, 2"); a(f"s_add_u32 s{sT[0]}, s{sT[0]}, s{sW}")
        a(f"s_lshl_b32 s{sT[0]}, s{sT[0]}, 8")
        self.pf_pos = len(a.ins)
        a(f"s_min_u32 s{sT[0]}, s{sT[0]}, 0")
        a(f"v_lshl_add_u32 v{t[1]}, v0, 2, s{sT[0]}")
        a(f"global_load_dword v{t[5]}, v{t[1]}, s[96:97]", tag='pf')
        pq = [sT[5], sT[6], sT[7], sT[8], sU[2], sU[3]]
        self.pq = pq
        a(f"s_cmp_lt_u32 s{sJ}, 10"); a("s_cbranch_scc0 L_pp1")
        mk(SP1, 12, 640 * 3072); mk(SP2, 14, 640 * 3072)
        a(f"s_mov_b32 s{pq[0]}, 0"); a(f"s_mov_b32 s{pq[1]}, 12288"); a(f"s_mov_b32 s{pq[2]}, 11")
        a(f"s_mov_b32 s{pq[3]}, 5462"); a(f"s_mov_b32 s{pq[4]}, {3072 - 192}")
        a(f"s_mul_i32 s{pq[5]}, s{sJ}, {64*3072}"); a(f"s_and_b32 s{sT[0]}, s2, 15"); a(f"s_mul_i32 s{sT[0]}, s{sT[0]}, 192")
        a(f"s_add_u32 s{pq[5]}, s{pq[5]}, s{sT[0]}")
        a("s_branch L_pp3")
        a("L_pp1:")
        a(f"s_cmp_lt_u32 s{sJ}, 14"); a("s_cbranch_scc0 L_pp2")
        mk(SP1, 16, 1536 * 1280); mk(SP2, 16, 1536 * 1280)
        a(f"s_mov_b32 s{pq[0]}, 16"); a(f"s_mov_b32 s{pq[1]}, 0"); a(f"s_mov_b32 s{pq[2]}, 29")
        a(f"s_mov_b32 s{pq[3]}, 3277"); a(f"s_mov_b32 s{pq[4]}, {1280 - 320}")
        a(f"s_sub_u32 s{sT[0]}, s2, 160"); a(f"s_lshr_b32 s{pq[5]}, s{sT[0]}, 2"); a(f"s_mul_i32 s{pq[5]}, s{pq[5]}, {96*1280}")
        a(f"s_and_b32 s{sT[0]}, s{sT[0]}, 3"); a(f"s_mul_i32 s{sT[0]}, s{sT[0]}, 320"); a(f"s_add_u32 s{pq[5]}, s{pq[5]}, s{sT[0]}")
        a("s_branch L_pp3")
        a("L_pp2:")
        mk(SP1, 8, 640 * 1280); mk(SP2, 8, 640 * 1280)
        a(f"s_mov_b32 s{pq[0]}, 16"); a(f"s_mov_b32 s{pq[1]}, 0"); a(f"s_mov_b32 s{pq[2]}, 24")
        a(f"s_mov_b32 s{pq[3]}, 6554"); a(f"s_mov_b32 s{pq[4]}, {1280 - 160}")
        a(f"s_bfe_u32 s{pq[5]}, s2, 0x20003"); a(f"s_mul_i32 s{pq[5]}, s{pq[5]}, {160*1280}")
        a(f"s_and_b32 s{sT[0]}, s2, 7"); a(f"s_mul_i32 s{sT[0]}, s{sT[0]}, 160"); a(f"s_add_u32 s{pq[5]}, s{pq[5]}, s{sT[0]}")
        a("L_pp3:")
        for L, m, n in ((12, 5462, 768), (20, 3277, 1920), (10, 6554, 1600)):
            assert all((u * m) >> 16 == u // L for u in range(n))
        a("s_waitcnt lgkmcnt(0)")
        a(f"s_xor_b32 s{sEH}, s{sEH}, {TAGC}")
        a(f"v_mov_b32 v{self.vF+1}, s{sEH}")
        self.stamp('prol')

    def p1_dma(self):
        a = self.a
        a(f"s_mov_b32 m0, s{self.sSW}")
        for i in range(4):
            a(f"buffer_load_dwordx4 v{self.DA+i}, {srd(SX)}, s{self.sOA} offen offset:{i*1024} lds", tag='p1')
        a(f"s_add_u32 m0, s{self.sSW}, 16384")
        for i in range(4):
            a(f"buffer_load_dwordx4 v{self.DB+i}, {srd(SWQ)}, s{self.sOB} offen offset:{i*1024} lds", tag='p1')
        a(f"s_add_u32 s{self.sSW}, s{self.sSW}, 32768"); a(f"s_and_b32 s{self.sSW}, s{self.sSW}, 0x1ffff")
        a(f"s_add_u32 s{self.sOA}, s{self.sOA}, 128"); a(f"s_add_u32 s{self.sOB}, s{self.sOB}, {64*3840}")
        a(f"s_add_u32 s{self.sK}, s{self.sK}, 1"); a(f"s_cmp_eq_u32 s{self.sK}, 10")
        a(f"s_cselect_b32 s{sT[0]}, 1280, 0"); a(f"s_sub_u32 s{self.sOA}, s{self.sOA}, s{sT[0]}")
        a(f"s_cmp_eq_u32 s{self.sK}, 10")
        a(f"s_cselect_b32 s{sT[0]}, {640*3840}, 0"); a(f"s_sub_u32 s{self.sOB}, s{self.sOB}, s{sT[0]}")

    def prep_dma(self):
        a = self.a; t = self.t; pq = self.pq
        for i in range(8):
            q = sU[0]
            a(f"s_add_u32 s{q}, s{sW}, {4*(i&3)}")
            if i >= 4: a(f"s_add_u32 s{q}, s{q}, s{pq[0]}")
            a(f"s_min_u32 s{q}, s{q}, s{pq[2]}")
            a(f"s_lshl_b32 s{sU[1]}, s{q}, 6")
            a(f"v_add_u32 v{t[1]}, s{sU[1]}, v0")
            a(f"v_mul_u32_u24 v{t[2]}, s{pq[3]}, v{t[1]}")
            a(f"v_lshrrev_b32 v{t[2]}, 16, v{t[2]}")
            a(f"v_lshlrev_b32 v{t[1]}, 4, v{t[1]}")
            a(f"v_mad_u32_u24 v{t[1]}, v{t[2]}, s{pq[4]}, v{t[1]}")
            a(f"s_lshl_b32 s{q}, s{q}, 10"); a(f"s_add_u32 s{q}, s{q}, {L_PREP}")
            if i >= 4: a(f"s_add_u32 s{q}, s{q}, s{pq[1]}")
            a(f"s_mov_b32 m0, s{q}")
            a(f"buffer_load_dwordx4 v{t[1]}, {srd(SP1 if i < 4 else SP2)}, s{pq[5]} offen lds", tag='prep')

    def p1(self):
        a = self.a; V = self.V; t = self.t
        ACC = V.alloc("acc", 64); CS = V.alloc("cs", 8); ONES = V.alloc("ones", 4)
        AF = V.alloc("AF", 64); BF = V.alloc("BF", 16)
        RA = V.alloc("RA", 4)
        CA = V.alloc("CA", 4)
        sIT, sSR = sF[0], sF[1]
        a(f"s_cmp_eq_u32 s{sCB}, 15"); a("s_cbranch_scc1 L_spare")
        a(f"v_lshrrev_b32 v{t[1]}, 1, v{self.vL15}"); a(f"v_xor_b32 v{t[1]}, v{t[1]}, v{self.vG4}")
        a(f"v_lshlrev_b32 v{t[1]}, 4, v{t[1]}"); a(f"v_lshl_add_u32 v{RA}, v{self.vL15}, 7, v{t[1]}")
        a(f"v_xor_b32 v{RA+1}, 64, v{RA}")
        a(f"v_bfe_u32 v{t[1]}, v0, 2, 2"); a(f"v_and_b32 v{t[2]}, 1, v{self.vG4}"); a(f"v_lshl_or_b32 v{t[2]}, v{t[2]}, 2, v{t[1]}")
        a(f"s_lshl_b32 s{sT[0]}, s{sW}, 1"); a(f"v_xor_b32 v{t[2]}, s{sT[0]}, v{t[2]}")
        a(f"v_lshl_add_u32 v{t[1]}, v{self.vG4}, 3, v{t[1]}"); a(f"v_lshlrev_b32 v{t[1]}, 8, v{t[1]}")
        a(f"v_lshl_add_u32 v{t[1]}, v{t[2]}, 5, v{t[1]}")
        a(f"v_and_b32 v{t[2]}, 3, v0"); a(f"v_lshl_add_u32 v{RA+2}, v{t[2]}, 3, v{t[1]}")
        a(f"v_xor_b32 v{RA+3}, 32, v{RA+2}")
        for i in range(72): a(f"v_mov_b32 v{ACC+i}, 0") if i < 64 else a(f"v_mov_b32 v{CS+i-64}, 0")
        for i in range(4): a(f"v_mov_b32 v{ONES+i}, 0x3f803f80")
        a(f"s_mov_b32 s{sIT}, 0"); a(f"s_mov_b32 s{sSR}, 0")
        a(f"s_cmp_ge_u32 s{sCB}, 10"); a("s_cbranch_scc1 L_p1v")

        def loop(kind):
            a.vmq = []; a.lgq = []
            a(f"L_p1{kind}:") if kind == 'v' else None
            a(f"L_top{kind}:")
            a("s_waitcnt vmcnt(16)")
            a(f"L_top2{kind}:")
            a("s_barrier")
            for i in range(4): a(f"v_add_u32 v{CA+i}, s{sSR}, v{RA+i}")
            def rdB(ks, ct):
                for hf in range(2):
                    a(f"ds_read_b64_tr_b16 {vr(BF+ks*8+ct*4+hf*2,2)}, v{CA+2+ct} offset:{16384+ks*8192+hf*1024}")
            def rdA(ks, rt):
                a(f"ds_read_b128 {vr(AF+ks*32+rt*4,4)}, v{CA+ks} offset:{rt*2048}")
            def mm(D, W, X):
                if kind == 'q': a(f"v_mfma_f32_16x16x32_bf16 {vr(D,4)}, {vr(W,4)}, {vr(X,4)}, {vr(D,4)}")
                else: a(f"v_mfma_f32_16x16x32_bf16 {vr(D,4)}, {vr(X,4)}, {vr(W,4)}, {vr(D,4)}")
            rdB(0, 0); rdB(0, 1)
            for rt in range(8): rdA(0, rt)
            a(f"s_cmp_ge_u32 s{sIT}, 7"); a(f"s_cbranch_scc1 L_alt")
            self.p1_dma()
            a(f"L_back{kind}:")
            nxt = [lambda: rdB(1, 0), lambda: rdB(1, 1)] + [(lambda rt=rt: rdA(1, rt)) for rt in range(8)]
            mm(CS, BF, ONES); mm(CS + 4, BF + 4, ONES)
            for rt in range(8):
                mm(ACC + rt * 8, BF, AF + rt * 4); mm(ACC + rt * 8 + 4, BF + 4, AF + rt * 4)
                nxt.pop(0)()
                if rt >= 6: nxt.pop(0)()
            mm(CS, BF + 8, ONES); mm(CS + 4, BF + 12, ONES)
            for rt in range(8):
                mm(ACC + rt * 8, BF + 8, AF + 32 + rt * 4); mm(ACC + rt * 8 + 4, BF + 12, AF + 32 + rt * 4)
            assert not a.lgq
            a(f"s_add_u32 s{sSR}, s{sSR}, 32768"); a(f"s_and_b32 s{sSR}, s{sSR}, 0x1ffff")
            a(f"s_add_u32 s{sIT}, s{sIT}, 1")
            a(f"s_cmp_lt_u32 s{sIT}, 9"); a(f"s_cbranch_scc1 L_top{kind}")
            a(f"s_cmp_eq_u32 s{sIT}, 10"); a(f"s_cbranch_scc1 L_epi{kind}")
            a("s_waitcnt vmcnt(8)")
            a(f"s_branch L_top2{kind}")
        loop('q')
        loop('v')
        a("L_alt:")
        a(f"s_cmp_eq_u32 s{sIT}, 7"); a("s_cbranch_scc0 L_altret")
        a("L_prepdma:")
        self.prep_dma()
        a(f"s_cmp_eq_u32 s{sCB}, 15"); a("s_cbranch_scc1 L_spare2")
        a("L_altret:")
        a(f"s_cmp_ge_u32 s{sCB}, 10"); a("s_cbranch_scc1 L_backv")
        a("s_branch L_backq")

        a("L_spare:")
        a.vmq = []; a.lgq = []
        X = ACC
        assert RA + 4 - ACC >= 160 and CS == ACC + 64 and ONES == CS + 8 and AF == ONES + 4 and BF == AF + 64 and RA == BF + 16
        S_ = V.alloc("ss", 8); Q_ = V.alloc("sq", 8); one = V.alloc("one1")
        a(f"s_lshl_b32 s{sT[0]}, s{sW}, 5"); a(f"v_add_u32 v{t[1]}, s{sT[0]}, v{self.vG4}")
        a(f"v_mul_u32_u24 v{t[1]}, 1280, v{t[1]}"); a(f"v_lshl_add_u32 v{t[1]}, v{self.vL15}, 4, v{t[1]}")
        a(f"s_mul_i32 s{sF[2]}, s{sRB}, {128*1280}")
        for gm in range(8):
            for i in range(5):
                a(f"buffer_load_dwordx4 {vr(X+(gm*5+i)*4,4)}, v{t[1]}, {srd(SX)}, s{sF[2]} offen offset:{i*256}")
            a(f"s_add_u32 s{sF[2]}, s{sF[2]}, {4*1280}")
        a(f"v_mov_b32 v{one}, 0x3f803f80")
        for i in range(8): a(f"v_mov_b32 v{S_+i}, 0"); a(f"v_mov_b32 v{Q_+i}, 0")
        for gm in range(8):
            for i in range(20):
                a(f"v_dot2c_f32_bf16 v{S_+gm}, v{X+gm*20+i}, v{one}")
                a(f"v_dot2c_f32_bf16 v{Q_+gm}, v{X+gm*20+i}, v{X+gm*20+i}")
        for sh in (8, 4, 2, 1):
            for r in list(range(S_, S_ + 8)) + list(range(Q_, Q_ + 8)):
                a(f"v_add_f32_dpp v{r}, v{r}, v{r} row_ror:{sh} row_mask:0xf bank_mask:0xf")
        for gm in range(1, 8):
            a(f"v_cmp_eq_u32 vcc, {gm}, v{self.vL15}")
            a(f"v_cndmask_b32 v{S_}, v{S_}, v{S_+gm}, vcc"); a(f"v_cndmask_b32 v{Q_}, v{Q_}, v{Q_+gm}, vcc")
        a(f"v_mul_f32 v{S_}, {f32(-1/640):#x}, v{S_}")
        a(f"v_mul_f32 v{Q_}, {f32(1/640):#x}, v{Q_}")
        a(f"v_fma_f32 v{Q_}, -v{S_}, v{S_}, v{Q_}")
        a(f"v_add_f32 v{Q_}, {f32(1e-5):#x}, v{Q_}")
        a(f"v_rsq_f32 v{Q_}, v{Q_}")
        a(f"v_lshl_add_u32 v{t[1]}, v{self.vL15}, 2, v{self.vG4}"); a(f"v_lshlrev_b32 v{t[1]}, 2, v{t[1]}")
        a(f"s_lshl_b32 s{sF[2]}, s{sRB}, 9"); a(f"s_lshl_b32 s{sT[0]}, s{sW}, 7"); a(f"s_add_u32 s{sF[2]}, s{sF[2]}, s{sT[0]}")
        a(f"s_add_u32 s{sF[2]}, s{sF[2]}, {WS_NM}"); a(f"s_add_u32 s{sF[3]}, s{sF[2]}, {WS_RS-WS_NM}")
        a("s_mov_b32 exec_lo, 0x00ff00ff"); a("s_mov_b32 exec_hi, 0x00ff00ff")
        a(f"buffer_store_dword v{S_}, v{t[1]}, {srd(SWS)}, s{sF[2]} offen sc1")
        a(f"buffer_store_dword v{Q_}, v{t[1]}, {srd(SWS)}, s{sF[3]} offen sc1")
        a("s_mov_b64 exec, -1")
        self.flag(1)
        a("s_branch L_prepdma")
        a("L_spare2:")
        a("s_waitcnt vmcnt(0)")
        a("s_branch L_p1done")
        V.rel("ss", "sq", "one1")

        def stat_poll():
            a(f"v_mov_b32 v{t[1]}, s{sRB}"); a(f"v_mov_b32 v{t[2]}, 15")
            self.wg_of_p1(t[3], t[1], t[2], t[4])
            a(f"v_lshlrev_b32 v{t[3]}, 7, v{t[3]}"); a(f"v_and_b32 v{t[1]}, 3, v0"); a(f"v_lshl_add_u32 v{t[3]}, v{t[1]}, 3, v{t[3]}")
            self.poll(t[3], 1)
            a(f"s_lshl_b32 s{sF[2]}, s{sRB}, 9"); a(f"s_add_u32 s{sF[2]}, s{sF[2]}, {WS_NM}"); a(f"s_add_u32 s{sF[3]}, s{sF[2]}, {WS_RS-WS_NM}")
        a("L_epiq:")
        a.vmq = []; a.lgq = []
        self.stamp('p1loop'); n0 = self.nts
        stat_poll()
        ST = AF
        a(f"v_lshlrev_b32 v{t[1]}, 2, v{self.vL15}")
        for rt in range(8):
            a(f"buffer_load_dword v{ST+2*rt}, v{t[1]}, {srd(SWS)}, s{sF[2]} offen offset:{rt*64} sc1")
            a(f"buffer_load_dword v{ST+2*rt+1}, v{t[1]}, {srd(SWS)}, s{sF[3]} offen offset:{rt*64} sc1")
        a(f"s_cmp_lt_u32 s{sCB}, 5"); a(f"s_cselect_b32 s{sF[4]}, {f32(LOG2E/math.sqrt(20)):#x}, 1.0")
        a(f"v_and_b32 v{t[1]}, 1, v{self.vG4}"); a(f"v_lshlrev_b32 v{t[1]}, 10, v{t[1]}")
        a(f"v_lshrrev_b32 v{t[2]}, 1, v{self.vG4}"); a(f"v_lshl_add_u32 v{t[1]}, v{t[2]}, 9, v{t[1]}")
        a(f"v_lshl_add_u32 v{t[1]}, v{self.vL15}, 4, v{t[1]}")
        a(f"s_mul_i32 s{sF[5]}, s{sRB}, {4*QKV_RB}"); a(f"s_lshl_b32 s{sT[0]}, s{sCB}, 13"); a(f"s_add_u32 s{sF[5]}, s{sF[5]}, s{sT[0]}")
        a(f"s_lshl_b32 s{sT[0]}, s{sW}, 11"); a(f"s_add_u32 s{sF[5]}, s{sF[5]}, s{sT[0]}"); a(f"s_add_u32 s{sF[5]}, s{sF[5]}, {WS_QKV}")
        PK = AF + 16
        for rt in range(8):
            s = ST + 2 * rt
            a(f"v_mul_f32 v{s+1}, s{sF[4]}, v{s+1}")
            for h in range(4):
                d = ACC + rt * 8 + 2 * h
                a(f"v_pk_fma_f32 {vr(d,2)}, {vr(CS+2*h,2)}, {vr(s,2)}, {vr(d,2)} op_sel_hi:[1,0,1]")
            for h in range(4):
                d = ACC + rt * 8 + 2 * h
                a(f"v_pk_mul_f32 {vr(d,2)}, {vr(d,2)}, {vr(s,2)} op_sel:[0,1]")
            p = PK + 4 * rt
            for h in range(4):
                d = ACC + rt * 8 + 2 * h
                a(f"v_cvt_pk_bf16_f32 v{p+h}, v{d}, v{d+1}")
            a(f"v_permlane16_swap_b32 v{p}, v{p+2}"); a(f"v_permlane16_swap_b32 v{p+1}, v{p+3}")
            a(f"buffer_store_dwordx4 {vr(p,4)}, v{t[1]}, {srd(SWS)}, s{sF[5]} offen offset:{(rt&1)*256} sc1")
            if rt & 1: a(f"s_add_u32 s{sF[5]}, s{sF[5]}, {QKV_RB}")
        self.flag(1)
        a("s_branch L_p1done")

        a("L_epiv:")
        a.vmq = []; a.lgq = []
        if self.ts: self.nts = n0 - 1; self.stamp('p1loop'); self.tsnames.pop()
        stat_poll()
        a(f"v_lshlrev_b32 v{t[1]}, 4, v{self.vG4}")
        for rt in range(8):
            a(f"buffer_load_dwordx4 {vr(AF+8*rt,4)}, v{t[1]}, {srd(SWS)}, s{sF[2]} offen offset:{rt*64} sc1")
            a(f"buffer_load_dwordx4 {vr(AF+8*rt+4,4)}, v{t[1]}, {srd(SWS)}, s{sF[3]} offen offset:{rt*64} sc1")
        assert all((n * 1639) >> 16 == n // 40 for n in range(640))
        a(f"s_sub_u32 s{sT[0]}, s{sCB}, 10"); a(f"s_lshl_b32 s{sT[0]}, s{sT[0]}, 7"); a(f"s_lshl_b32 s{sF[4]}, s{sW}, 5")
        a(f"s_add_u32 s{sT[0]}, s{sT[0]}, s{sF[4]}")
        a(f"s_movk_i32 s{sF[4]}, 1920")
        for ct in range(2):
            a(f"v_add_u32 v{t[3]}, s{sT[0]}, v{self.vL15}")
            if ct: a(f"v_add_u32 v{t[3]}, 16, v{t[3]}")
            a(f"v_mul_u32_u24 v{t[4]}, 1639, v{t[3]}"); a(f"v_lshrrev_b32 v{t[4]}, 16, v{t[4]}")
            a(f"v_lshlrev_b32 v{t[3]}, 4, v{t[3]}"); a(f"v_mad_u32_u24 v{t[3]}, v{t[4]}, s{sF[4]}, v{t[3]}")
            a(f"v_mul_u32_u24 v{t[4]}, 640, v{self.vG4}"); a(f"v_add_u32 v{CA+ct}, v{t[3]}, v{t[4]}")
        a(f"s_mul_i32 s{sF[5]}, s{sRB}, {4*QKV_RB}"); a(f"s_add_u32 s{sF[5]}, s{sF[5]}, {WS_QKV + 160*512}")
        for kb in range(4):
            for ct in range(2):
                p = BF + 4 * ((kb * 2 + ct) & 3)
                for o in range(2):
                    rt = 2 * kb + o
                    for h in range(2):
                        d = ACC + rt * 8 + ct * 4 + 2 * h
                        a(f"v_pk_fma_f32 {vr(d,2)}, {vr(CS+4*ct,2)}, {vr(AF+8*rt+2*h,2)}, {vr(d,2)}")
                        a(f"v_pk_mul_f32 {vr(d,2)}, {vr(d,2)}, {vr(AF+8*rt+4+2*h,2)}")
                        a(f"v_cvt_pk_bf16_f32 v{p+2*o+h}, v{d}, v{d+1}")
                a(f"buffer_store_dwordx4 {vr(p,4)}, v{CA+ct}, {srd(SWS)}, s{sF[5]} offen sc1")
            a(f"s_add_u32 s{sF[5]}, s{sF[5]}, {QKV_RB}")
        self.flag(1)
        a("L_p1done:")
        a.vmq = []; a.lgq = []
        V.rel("acc", "cs", "ones", "AF", "BF", "RA", "CA", "DA", "DB")
        self.stamp('p1flag')

    def prep(self):
        a = self.a; V = self.V; t = self.t
        R = V.alloc("prepR", 40); A3 = V.alloc("prepA", 4)
        a("s_barrier")
        rho, c = t[1], t[2]
        a(f"v_bfe_u32 v{rho}, v0, 2, 2"); a(f"v_and_b32 v{c}, 3, v0")
        a(f"s_cmp_lt_u32 s{sJ}, 10"); a("s_cbranch_scc0 L_pr1")
        a(f"v_lshl_add_u32 v{t[3]}, v{self.vG4}, 3, v{rho}"); a(f"v_mul_u32_u24 v{t[3]}, 192, v{t[3]}")
        a(f"v_and_b32 v{t[4]}, 1, v{c}"); a(f"v_mul_u32_u24 v{t[4]}, 12288, v{t[4]}"); a(f"v_add_u32 v{t[3]}, v{t[3]}, v{t[4]}")
        a(f"v_lshrrev_b32 v{t[4]}, 1, v{c}"); a(f"v_lshl_add_u32 v{t[3]}, v{t[4]}, 3, v{t[3]}")
        a(f"s_mul_i32 s{sT[0]}, s{sW}, 48"); a(f"s_add_u32 s{sT[0]}, s{sT[0]}, {L_PREP}"); a(f"v_add_u32 v{A3}, s{sT[0]}, v{t[3]}")
        for kl in range(2):
            for tt in range(3):
                for hf in range(2):
                    a(f"ds_read_b64_tr_b16 {vr(R+(kl*3+tt)*4+2*hf,2)}, v{A3} offset:{kl*6144+hf*768+tt*16}")
        a(f"v_and_b32 v{t[3]}, 0x39, v0")
        a(f"v_bfe_u32 v{t[4]}, v0, 1, 1"); a(f"v_lshl_or_b32 v{t[3]}, v{t[4]}, 2, v{t[3]}")
        a(f"v_bfe_u32 v{t[4]}, v0, 2, 1"); a(f"v_lshl_or_b32 v{t[3]}, v{t[4]}, 1, v{t[3]}")
        a(f"v_lshlrev_b32 v{t[3]}, 4, v{t[3]}")
        a(f"s_and_b32 s{sT[0]}, s2, 15"); a(f"s_lshl_b32 s{sT[0]}, s{sT[0]}, 2"); a(f"s_add_u32 s{sT[0]}, s{sT[0]}, s{sW}")
        a(f"s_mul_i32 s{sT[0]}, s{sT[0]}, 20"); a(f"s_lshl_b32 s{sT[1]}, s{sJ}, 1"); a(f"s_add_u32 s{sT[0]}, s{sT[0]}, s{sT[1]}")
        a(f"s_mul_i32 s{sT[0]}, s{sT[0]}, 3072"); a(f"s_add_u32 s{sT[0]}, s{sT[0]}, {WS_W4F}")
        a(f"s_add_u32 s{sT[1]}, s{sT[0]}, 3072")
        for kl in range(2):
            for tt in range(3):
                a(f"buffer_store_dwordx4 {vr(R+(kl*3+tt)*4,4)}, v{t[3]}, {srd(SWS)}, s{sT[kl]} offen offset:{tt*1024} sc1")
        a("s_branch L_prdone")
        a("L_pr1:")
        a.vmq = []; a.lgq = []
        a(f"s_cmp_lt_u32 s{sJ}, 14"); a("s_cbranch_scc0 L_pr2")
        a(f"v_lshl_add_u32 v{t[3]}, v{self.vG4}, 3, v{rho}"); a(f"v_mul_u32_u24 v{t[3]}, 320, v{t[3]}")
        a(f"v_lshl_add_u32 v{t[3]}, v{c}, 3, v{t[3]}")
        a(f"s_sub_u32 s{sT[0]}, s2, 160"); a(f"s_lshr_b32 s{sT[1]}, s{sT[0]}, 2"); a(f"s_mul_i32 s{sT[1]}, s{sT[1]}, 3")
        a(f"s_and_b32 s{sT[0]}, s{sT[0]}, 3"); a(f"s_mul_i32 s{sT[0]}, s{sT[0]}, 96"); a(f"s_add_u32 s{sT[0]}, s{sT[0]}, s{sT[1]}")
        a(f"s_mul_i32 s{sT[0]}, s{sT[0]}, 5120"); a(f"s_add_u32 s{sT[0]}, s{sT[0]}, {WS_W5F}")
        for x in range(3):
            a(f"s_add_u32 s{sT[1]}, s{sW}, {4*x}"); a(f"s_min_u32 s{sT[1]}, s{sT[1]}, 9")
            a(f"s_lshl_b32 s{sT[2]}, s{sT[1]}, 5"); a(f"s_add_u32 s{sT[2]}, s{sT[2]}, {L_PREP}")
            a(f"v_add_u32 v{A3+x}, s{sT[2]}, v{t[3]}")
            a(f"s_cmp_ge_u32 s{sT[1]}, 5"); a(f"s_cselect_b32 s{sT[2]}, {48*5120 - 5*1024}, 0")
            a(f"s_lshl_b32 s{sT[1]}, s{sT[1]}, 10"); a(f"s_add_u32 s{sT[1]}, s{sT[1]}, s{sT[2]}")
            a(f"s_add_u32 s{sT[3+x]}, s{sT[1]}, s{sT[0]}")
            for kl in range(3):
                for hf in range(2):
                    a(f"ds_read_b64_tr_b16 {vr(R+(x*3+kl)*4+2*hf,2)}, v{A3+x} offset:{kl*10240+hf*1280}")
            if x: self._w2st(R, x - 1)
        self._w2st(R, 2)
        a("s_branch L_prdone")
        a("L_pr2:")
        a.vmq = []; a.lgq = []
        a(f"s_sub_u32 s{sT[0]}, s2, 224")
        a(f"s_and_b32 s{sT[1]}, s{sT[0]}, 7"); a(f"s_lshl_b32 s{sT[1]}, s{sT[1]}, 2"); a(f"s_lshr_b32 s{sT[0]}, s{sT[0]}, 3")
        a(f"s_add_u32 s{sT[0]}, s{sT[0]}, s{sT[1]}"); a(f"s_mul_i32 s{sT[0]}, s{sT[0]}, 25600"); a(f"s_add_u32 s{sT[0]}, s{sT[0]}, {WS_W3F}")
        tab0 = 0 | (4 << 6) | (20 << 12) | (24 << 18) | (16 << 24)
        tab1 = 8 | (12 << 6) | (28 << 12) | (32 << 18) | (36 << 24)
        a(f"s_mov_b32 s{sT[5]}, {tab0}"); a(f"s_mov_b32 s{sT[6]}, {tab1}")
        for i in range(7):
            q, kp, tt = sT[1], sT[2], sT[3]
            a(f"s_add_u32 s{q}, s{sW}, {4*i}"); a(f"s_min_u32 s{q}, s{q}, 24")
            a(f"s_mul_i32 s{kp}, s{q}, 52"); a(f"s_lshr_b32 s{kp}, s{kp}, 8")
            a(f"s_mul_i32 s{tt}, s{kp}, 5"); a(f"s_sub_u32 s{tt}, s{q}, s{tt}")
            a(f"s_lshl_b32 s{kp}, s{kp}, 2"); a(f"s_lshl_b32 s{tt}, s{tt}, 5"); a(f"s_add_u32 s{tt}, s{tt}, {L_PREP}")
            a(f"v_add_u32 v{t[3]}, s{kp}, v{self.vG4}")
            a(f"v_mul_u32_u24 v{t[4]}, 52, v{t[3]}"); a(f"v_lshrrev_b32 v{t[4]}, 8, v{t[4]}")
            a(f"v_mul_u32_u24 v{t[5]}, 5, v{t[4]}"); a(f"v_sub_u32 v{t[3]}, v{t[3]}, v{t[5]}")
            a(f"v_mul_u32_u24 v{t[3]}, 6, v{t[3]}")
            a(f"v_mul_u32_u24 v{t[4]}, 40, v{t[4]}"); a(f"v_add_u32 v{t[4]}, v{t[4]}, v{rho}")
            for hf in range(2):
                a(f"v_bfe_u32 v{t[5]}, s{sT[5+hf]}, v{t[3]}, 6"); a(f"v_add_u32 v{t[5]}, v{t[5]}, v{t[4]}")
                a(f"v_mul_u32_u24 v{t[5]}, 160, v{t[5]}"); a(f"v_lshl_add_u32 v{t[5]}, v{c}, 3, v{t[5]}")
                a(f"v_add_u32 v{A3+hf}, s{tt}, v{t[5]}")
                a(f"ds_read_b64_tr_b16 {vr(R+i*4+2*hf,2)}, v{A3+hf}")
            a(f"s_lshl_b32 s{q}, s{q}, 10"); a(f"s_add_u32 s{q}, s{q}, s{sT[0]}")
            a(f"buffer_store_dwordx4 {vr(R+i*4,4)}, v{self.vL16}, {srd(SWS)}, s{q} offen sc1")
        assert all((C * 52) >> 8 == C // 5 for C in range(25))
        a("L_prdone:")
        a.vmq = []; a.lgq = []
        V.rel("prepR", "prepA")

    def _w2st(self, R, x):
        a = self.a
        for kl in range(3):
            if kl: a(f"s_add_u32 s{sT[3+x]}, s{sT[3+x]}, 5120")
            a(f"buffer_store_dwordx4 {vr(R+(x*3+kl)*4,4)}, v{self.vL16}, {srd(SWS)}, s{sT[3+x]} offen sc1")

    def p2(self):
        a = self.a; V = self.V; t = self.t
        sP, sWR, sQB = sF[0], sF[1], sF[2]
        a(f"s_and_b32 s{sP}, s{sW}, 1"); a(f"s_lshr_b32 s{sWR}, s{sW}, 1")
        q, h = V.alloc("q31"), V.alloc("h5")
        a(f"v_and_b32 v{q}, 31, v0"); a(f"v_lshrrev_b32 v{h}, 5, v0")
        M = V.alloc("M", 8)
        a(f"v_lshlrev_b32 v{t[1]}, 2, v{h}"); a(f"v_sub_u32 v{t[1]}, v{q}, v{t[1]}")
        for r in range(16):
            b = 16 * ((r >> 2) & 1) + 8 * (r >> 3) + (r & 3)
            a(f"v_cmp_le_i32 s[{SM+2*r}:{SM+2*r+1}], {b}, v{t[1]}")
        a(f"v_mov_b32 v{t[2]}, 0xffff"); a(f"v_mov_b32 v{t[3]}, 0xffff0000")
        for d in range(8):
            a(f"v_cndmask_b32 v{M+d}, 0, v{t[2]}, s[{SM+4*d}:{SM+4*d+1}]")
            a(f"v_cndmask_b32 v{t[4]}, 0, v{t[3]}, s[{SM+4*d+2}:{SM+4*d+3}]")
            a(f"v_or_b32 v{M+d}, v{M+d}, v{t[4]}")
        KM, KT, V0, V1, QT = V.alloc("KM"), V.alloc("KT"), V.alloc("V0"), V.alloc("V1"), V.alloc("QT")
        a(f"v_and_b32 v{t[1]}, 7, v0"); a(f"v_bfe_u32 v{t[2]}, v0, 3, 1"); a(f"v_lshl_or_b32 v{t[1]}, v{t[2]}, 4, v{t[1]}")
        a(f"v_bfe_u32 v{t[2]}, v0, 4, 1"); a(f"v_lshl_or_b32 v{t[1]}, v{t[2]}, 3, v{t[1]}")
        a(f"v_lshlrev_b32 v{t[1]}, 4, v{t[1]}")
        a(f"s_mul_i32 s{sT[0]}, s{sWR}, {2*KVT}")
        a(f"s_mul_i32 s{sT[1]}, s{sP}, 1536"); a(f"s_add_u32 s{sT[1]}, s{sT[1]}, s{sT[0]}")
        a(f"v_lshl_add_u32 v{KM}, v{h}, 9, v{t[1]}"); a(f"v_add_u32 v{KM}, s{sT[1]}, v{KM}")
        a(f"s_lshl_b32 s{sT[1]}, s{sP}, 3"); a(f"s_add_u32 s{sT[2]}, s{sT[1]}, s{sT[0]}"); a(f"s_add_u32 s{sT[2]}, s{sT[2]}, 1024")
        a(f"v_add_u32 v{KT}, s{sT[2]}, v{t[1]}")
        a(f"v_lshl_add_u32 v{QT}, v{q}, 4, s{sT[1]}")
        a(f"s_mul_i32 s{sT[1]}, s{sP}, 320"); a(f"s_add_u32 s{sT[0]}, s{sT[0]}, {L_V}"); a(f"s_add_u32 s{sT[1]}, s{sT[1]}, s{sT[0]}")
        a(f"v_mul_u32_u24 v{t[1]}, 640, v{h}"); a(f"v_lshl_add_u32 v{t[1]}, v{q}, 4, v{t[1]}"); a(f"v_add_u32 v{V0}, s{sT[1]}, v{t[1]}")
        a(f"v_add_u32 v{V1}, 1280, v{V0}")
        a(f"s_add_u32 s{sT[0]}, s{sT[0]}, 2560"); a(f"v_mov_b32 v{t[1]}, s{sT[0]}")
        a(f"v_cmp_gt_u32 vcc, 20, v{q}")
        a(f"v_cndmask_b32 v{V0}, v{t[1]}, v{V0}, vcc"); a(f"v_cndmask_b32 v{V1}, v{t[1]}, v{V1}, vcc")
        ON = V.alloc("ON", 4)
        a(f"v_min_u32 v{t[1]}, 11, v0"); a(f"s_lshl_b32 s{sT[0]}, s{sG}, 2"); a(f"v_add_u32 v{t[2]}, s{sT[0]}, v{t[1]}")
        a(f"v_cmp_le_u32 vcc, 8, v{t[2]}"); a(f"v_mov_b32 v{t[3]}, 0x3f803f80")
        a(f"v_mul_u32_u24 v{t[1]}, {KVT}, v{t[1]}")
        for i in range(4): a(f"v_cndmask_b32 v{ON+i}, 0, v{t[3]}, vcc")
        a(f"ds_write_b128 v{t[1]}, {vr(ON,4)} offset:{L_V+2560}")
        V.rel("ON")
        FA = V.alloc("FA")
        a(f"v_min_u32 v{t[1]}, 13, v0"); a(f"v_lshrrev_b32 v{t[2]}, 1, v{t[1]}"); a(f"v_add_u32 v{t[2]}, 2, v{t[2]}")
        a(f"v_mul_u32_u24 v{t[3]}, 11, v{t[2]}"); a(f"v_lshrrev_b32 v{t[3]}, 5, v{t[3]}")
        a(f"v_mul_u32_u24 v{t[4]}, 3, v{t[3]}"); a(f"v_sub_u32 v{t[2]}, v{t[2]}, v{t[4]}")
        a(f"s_sub_u32 s{sT[0]}, s{sG}, 2"); a(f"v_add_u32 v{t[2]}, s{sT[0]}, v{t[2]}"); a(f"v_max_i32 v{t[2]}, 0, v{t[2]}")
        a(f"s_mul_i32 s{sT[0]}, s{sJ}, 40"); a(f"s_lshr_b32 s{sT[0]}, s{sT[0]}, 5")
        a(f"v_and_b32 v{t[1]}, 1, v{t[1]}"); a(f"v_add_u32 v{t[1]}, s{sT[0]}, v{t[1]}")
        a(f"v_mul_u32_u24 v{t[3]}, 5, v{t[3]}"); a(f"v_lshrrev_b32 v{t[4]}, 2, v{t[1]}"); a(f"v_add_u32 v{t[3]}, v{t[3]}, v{t[4]}")
        self.wg_of_p1(FA, t[2], t[3], t[4])
        a(f"v_lshlrev_b32 v{FA}, 7, v{FA}"); a(f"v_and_b32 v{t[1]}, 3, v{t[1]}"); a(f"v_lshl_add_u32 v{FA}, v{t[1]}, 3, v{FA}")
        QM = V.alloc("QM", 8); QL = V.alloc("QL", 4)
        for i in range(4): a(f"v_mov_b32 v{QL+i}, 0")
        KN = V.alloc("KN"); a(f"v_lshlrev_b32 v{KN}, 9, v{h}")
        self.flag(2)
        self.stamp('prepflag')
        self.poll(FA, 1)
        self.stamp('qkvseen')
        V.rel("FA")
        sKo = [sF[3], sF[4], sF[5]]; sVo = [sF[6], sF[7], sF[8]]; sM0 = sF[9]
        KV = V.alloc("KV", 3)
        a(f"s_mul_i32 s{sT[2]}, s{sJ}, 2560"); a(f"s_add_u32 s{sT[2]}, s{sT[2]}, {WS_QKV}")
        a(f"s_mul_i32 s{sM0}, s{sW}, {3*KVT}")
        a(f"s_lshl_b32 s{sT[0]}, s{sG}, 2"); a(f"s_mul_i32 s{sT[1]}, s{sW}, 3"); a(f"s_add_u32 s{sT[0]}, s{sT[0]}, s{sT[1]}"); a(f"s_sub_u32 s{sT[0]}, s{sT[0]}, 8")
        for x in range(3):
            a(f"s_add_u32 s{sT[1]}, s{sT[0]}, {x}")
            a(f"s_max_i32 s{sT[3]}, s{sT[1]}, 0"); a(f"s_mul_i32 s{sT[3]}, s{sT[3]}, {QKV_RB}"); a(f"s_add_u32 s{sT[3]}, s{sT[3]}, s{sT[2]}")
            a(f"s_add_u32 s{sKo[x]}, s{sT[3]}, {80*512}"); a(f"s_add_u32 s{sVo[x]}, s{sT[3]}, {160*512}")
            a(f"s_cmp_lt_i32 s{sT[1]}, 0")
            a(f"s_cselect_b32 s{sVo[x]}, {WS_SIZE}, s{sVo[x]}")
            a(f"s_cselect_b64 vcc, -1, 0")
            a(f"v_cndmask_b32 v{KV+x}, v{self.vL16}, v{KN}, vcc")
        a(f"s_lshl_b32 s{sQB}, s{sG}, 2"); a(f"s_lshl_b32 s{sT[0]}, s{sWR}, 1"); a(f"s_add_u32 s{sQB}, s{sQB}, s{sT[0]}")
        a(f"s_mul_i32 s{sT[0]}, s{sQB}, {QKV_RB}"); a(f"s_add_u32 s{sT[0]}, s{sT[0]}, s{sT[2]}")
        a(f"s_mul_i32 s{sT[1]}, s{sP}, 1536"); a(f"s_add_u32 s{sT[1]}, s{sT[1]}, s{sT[0]}")
        a(f"s_add_u32 s{sT[3]}, s{sT[0]}, {QKV_RB}"); a(f"s_add_u32 s{sT[4]}, s{sT[1]}, {QKV_RB}")
        for x in range(3):
            a(f"s_add_u32 m0, s{sM0}, {L_K + x*KVT}")
            for i in range(2):
                a(f"buffer_load_dwordx4 v{KV+x}, {srd(SWS)}, s{sKo[x]} offen offset:{i*1024} sc1 lds", tag='K')
        a(f"buffer_load_dwordx4 {vr(QM,4)}, v{self.vL16}, {srd(SWS)}, s{sT[1]} offen sc1")
        a(f"buffer_load_dwordx4 {vr(QM+4,4)}, v{self.vL16}, {srd(SWS)}, s{sT[4]} offen sc1")
        a("s_mov_b32 exec_hi, 0")
        for x in range(3):
            a(f"s_add_u32 m0, s{sM0}, {L_K + x*KVT}")
            a(f"buffer_load_dwordx4 v{KV+x}, {srd(SWS)}, s{sKo[x]} offen offset:2048 sc1 lds", tag='K')
        a(f"buffer_load_dwordx2 {vr(QL,2)}, v{QT}, {srd(SWS)}, s{sT[0]} offen offset:1024 sc1")
        a(f"buffer_load_dwordx2 {vr(QL+2,2)}, v{QT}, {srd(SWS)}, s{sT[3]} offen offset:1024 sc1")
        for x in range(3):
            a(f"s_add_u32 m0, s{sM0}, {L_V + x*KVT}")
            a(f"buffer_load_dwordx4 v{self.vL16}, {srd(SWS)}, s{sVo[x]} offen offset:2048 sc1 lds", tag='V')
        a("s_mov_b64 exec, -1")
        for x in range(3):
            a(f"s_add_u32 m0, s{sM0}, {L_V + x*KVT}")
            for i in range(2):
                a(f"buffer_load_dwordx4 v{self.vL16}, {srd(SWS)}, s{sVo[x]} offen offset:{i*1024} sc1 lds", tag='V')
        V.rel("KV", "KN")
        a("s_waitcnt vmcnt(0) lgkmcnt(0)")
        a("s_barrier")
        self.stamp('kvin')
        self.weights_prefetch_setup()

        S = [V.alloc("S0", 16), V.alloc("S1", 16)]; NM = V.alloc("NM", 16); O = V.alloc("O", 16)
        P = [V.alloc("P0", 8), V.alloc("P1", 8)]; P2 = V.alloc("P2", 8)
        KF = [V.alloc("KF0", 4), V.alloc("KF1", 4)]; KL = [V.alloc("KL0", 2), V.alloc("KL1", 2)]
        VF = [240, 248]
        mx = t[1]
        E = self.emit_costed
        for hf in range(2):
            def rdK(i, b):
                return [f"ds_read_b128 {vr(KF[b],4)}, v{KM} offset:{(i+hf)*KVT}", f"ds_read_b64 {vr(KL[b],2)}, v{KT} offset:{(i+hf)*KVT}"]
            def rdV(i, b):
                return [f"ds_read_b128 {ar(VF[b],4)}, v{V0} offset:{(i+hf)*KVT}", f"ds_read_b128 {ar(VF[b]+4,4)}, v{V1} offset:{(i+hf)*KVT}"]
            def mS1(sb, b, C):
                return f"v_mfma_f32_32x32x16_bf16 {vr(S[sb],16)}, {vr(KF[b],4)}, {vr(QM+4*hf,4)}, {C}"
            def mS2(sb, b):
                return f"v_mfma_f32_32x32x8_bf16 {vr(S[sb],16)}, {vr(KL[b],2)}, {vr(QL+2*hf,2)}, {vr(S[sb],16)}"
            def mPV(Pr, b, k, first):
                return f"v_mfma_f32_32x32x16_bf16 {vr(O,16)}, {ar(VF[b]+4*k,4)}, {vr(Pr+4*k,4)}, {'0' if first else vr(O,16)}"
            order = [0, 8, 1, 2, 3, 4, 5, 6, 7]
            for x in rdK(0, 0) + rdK(8, 1): E(x)
            E(mS1(0, 0, '0')); E(mS2(0, 0))
            for x in rdK(1, 0): E(x)
            E(mS1(1, 1, '0')); E(mS2(1, 1))
            for x in rdK(2, 1): E(x)
            comb = [f"v_cndmask_b32 v{NM+r}, v{S[0]+r}, v{S[1]+r}, s[{SM+2*r}:{SM+2*r+1}]" for r in range(16)]
            for x in comb: E(x)
            def maxs(R, first):
                o = []
                if first:
                    o.append(f"v_max3_f32 v{mx}, v{R}, v{R+1}, v{R+2}")
                    o.append(f"v_max_f32 v{mx}, v{mx}, v{R+3}")
                    rng = range(4, 16, 2)
                else: rng = range(0, 16, 2)
                for r in rng: o.append(f"v_max3_f32 v{mx}, v{mx}, v{R+r}, v{R+r+1}")
                return o
            self.interleave(maxs(NM, True), [[mS1(0, 0, '0')], [mS2(0, 0)] + rdK(3, 0)])
            for i in range(2, 8):
                b = (i + 1) & 1
                nk = rdK(i + 2, b) if i + 2 <= 7 else (rdK(0, b) if i == 7 else [])
                self.interleave(maxs(S[b ^ 1], False), [[mS1(b, b, '0')], [mS2(b, b)] + nk])
            for x in rdK(8, 1): E(x)
            for x in maxs(S[0], False): E(x)
            E(f"v_mov_b32 v{t[2]}, v{mx}")
            E(f"v_permlane32_swap_b32 v{mx}, v{t[2]}")
            for r in range(16): E(f"v_min_f32 v{NM+r}, -v{mx}, -v{t[2]}")
            C = vr(NM, 16)
            E(mS1(0, 0, C)); E(mS2(0, 0))
            for x in rdK(1, 0): E(x)
            E(mS1(1, 1, C)); E(mS2(1, 1))
            for x in rdK(2, 1) + rdV(0, 0) + rdV(8, 1): E(x)
            for r in range(16): E(f"v_cndmask_b32 v{S[1]+r}, v{S[0]+r}, v{S[1]+r}, s[{SM+2*r}:{SM+2*r+1}]")
            def expcvt(R, Pd):
                o = []
                for d in range(8):
                    o.append(f"v_exp_f32 v{R+2*d}, v{R+2*d}"); o.append(f"v_exp_f32 v{R+2*d+1}, v{R+2*d+1}")
                    if d: o.append(f"v_cvt_pk_bf16_f32 v{Pd+d-1}, v{R+2*d-2}, v{R+2*d-1}")
                o.append(f"v_cvt_pk_bf16_f32 v{Pd+7}, v{R+14}, v{R+15}")
                return o
            msk = [f"v_bfi_b32 v{P[0]+d}, v{M+d}, 0, v{P2+d}" for d in range(8)] + [f"v_and_b32 v{P2+d}, v{M+d}, v{P2+d}" for d in range(8)]
            self.interleave(expcvt(S[1], P2) + msk, [[mS1(0, 0, C)], [mS2(0, 0)] + rdK(3, 0)])
            for i in range(1, 8):
                sb = (i + 1) & 1
                mf = []
                if i + 1 <= 7:
                    nb = sb ^ 1
                    mf.append([mS1(nb, nb, C)])
                    mf.append([mS2(nb, nb)] + (rdK(i + 3, nb) if i + 3 <= 7 else []))
                if i == 1:
                    mf.append([mPV(P[0], 0, 0, True)]); mf.append([mPV(P[0], 0, 1, False)] + rdV(1, 0))
                    mf.append([mPV(P2, 1, 0, False)]); mf.append([mPV(P2, 1, 1, False)] + rdV(2, 1))
                else:
                    vb = i & 1
                    mf.append([mPV(P[(i - 1) & 1], vb, 0, False)])
                    mf.append([mPV(P[(i - 1) & 1], vb, 1, False)] + (rdV(i + 1, vb) if i + 1 <= 7 else []))
                self.interleave(expcvt(S[sb], P[i & 1]), mf)
            E(mPV(P[1], 0, 0, False)); E(mPV(P[1], 0, 1, False))
            E(f"v_rcp_f32 v{t[2]}, v{O+12}")
            for r in range(12): E(f"v_mul_f32 v{O+r}, v{t[2]}, v{O+r}")
            for d in range(6): E(f"v_cvt_pk_bf16_f32 v{P2+d}, v{O+2*d}, v{O+2*d+1}")
            a(f"s_add_u32 s{sT[0]}, s{sQB}, {hf}"); a(f"s_mul_i32 s{sT[0]}, s{sT[0]}, {OH_RB}")
            a(f"s_mul_i32 s{sT[1]}, s{sJ}, 2560"); a(f"s_add_u32 s{sT[0]}, s{sT[0]}, s{sT[1]}"); a(f"s_add_u32 s{sT[0]}, s{sT[0]}, {WS_O}")
            a(f"s_lshl_b32 s{sT[1]}, s{sP}, 10"); a(f"s_add_u32 s{sT[1]}, s{sT[1]}, s{sT[0]}")
            a(f"buffer_store_dwordx4 {vr(P2,4)}, v{self.vL16}, {srd(SWS)}, s{sT[1]} offen sc1")
            a("s_mov_b32 exec_hi, 0")
            a(f"buffer_store_dwordx2 {vr(P2+4,2)}, v{QT}, {srd(SWS)}, s{sT[0]} offen offset:2048 sc1")
            a("s_mov_b64 exec, -1")
            self.flag(3 + hf)
            self.stamp(f'p2_{hf}')
        V.rel("S0", "S1", "NM", "O", "P0", "P1", "P2", "KF0", "KF1", "KL0", "KL1", "QM", "QL", "KM", "KT", "V0", "V1", "QT", "M", "q31", "h5")

    def weights_prefetch_setup(self):
        a = self.a; V = self.V; t = self.t
        self.sCB8, self.sRH = sF[10], sF[11]
        a(f"s_and_b32 s{self.sCB8}, s{sJ}, 7"); a(f"s_lshr_b32 s{self.sRH}, s{sJ}, 3")
        a(f"v_min_u32 v{t[1]}, 9, v0"); a(f"v_lshlrev_b32 v{t[1]}, 11, v{t[1]}")
        a(f"s_lshl_b32 s{sT[0]}, s{sJ}, 7"); a(f"s_lshl_b32 s{sT[1]}, s{sW}, 3"); a(f"s_add_u32 s{sT[0]}, s{sT[0]}, s{sT[1]}")
        a(f"v_add_u32 v{t[1]}, s{sT[0]}, v{t[1]}")
        a(f"v_and_b32 v{t[2]}, 3, v0"); a(f"v_lshlrev_b32 v{t[2]}, 3, v{t[2]}")
        a(f"v_bfe_u32 v{t[3]}, v0, 2, 2"); a(f"v_lshl_add_u32 v{t[3]}, v{t[3]}, 9, v{t[2]}")
        a(f"s_lshl_b32 s{sT[0]}, s{sW}, 4"); a(f"s_lshr_b32 s{sT[1]}, s{self.sCB8}, 1"); a(f"s_add_u32 s{sT[0]}, s{sT[0]}, s{sT[1]}")
        a(f"s_add_u32 s{sT[0]}, s{sT[0]}, 160"); a(f"s_lshl_b32 s{sT[0]}, s{sT[0]}, 7"); a(f"v_add_u32 v{t[3]}, s{sT[0]}, v{t[3]}")
        a(f"s_lshl_b32 s{sT[0]}, s{sW}, 3"); a(f"s_add_u32 s{sT[0]}, s{sT[0]}, s{self.sCB8}"); a(f"s_add_u32 s{sT[0]}, s{sT[0]}, 224")
        a(f"s_lshl_b32 s{sT[0]}, s{sT[0]}, 7"); a(f"v_add_u32 v{t[2]}, s{sT[0]}, v{t[2]}")
        a(f"v_cmp_gt_u32 vcc, 16, v0"); a(f"v_cndmask_b32 v{t[1]}, v{t[3]}, v{t[1]}, vcc")
        a(f"v_cmp_gt_u32 vcc, 32, v0"); a(f"v_cndmask_b32 v{t[1]}, v{t[2]}, v{t[1]}, vcc")
        self.poll(t[1], 2)
        self.stamp('prepseen')
        self.W3 = V.alloc("W3", 100)
        s3, s4, s5 = sF[12], sF[13], sF[14]
        self.s5 = s5
        a(f"s_lshl_b32 s{sT[0]}, s{self.sCB8}, 2"); a(f"s_add_u32 s{sT[0]}, s{sT[0]}, s{sW}")
        a(f"s_mul_i32 s{s3}, s{sT[0]}, 25600"); a(f"s_add_u32 s{s3}, s{s3}, {WS_W3F}")
        a(f"s_mul_i32 s{s5}, s{sT[0]}, 61440"); a(f"s_add_u32 s{s5}, s{s5}, {WS_W5F}")
        a(f"s_lshl_b32 s{sT[0]}, s{sJ}, 2"); a(f"s_add_u32 s{sT[0]}, s{sT[0]}, s{sW}")
        a(f"s_mul_i32 s{s4}, s{sT[0]}, 61440"); a(f"s_add_u32 s{s4}, s{s4}, {WS_W4F}")
        def mk(dst, s, i):
            def f():
                a(f"buffer_load_dwordx4 {dst}, v{self.vL16}, {srd(SWS)}, s{s} offen offset:{(i&3)*1024} sc1")
                if (i & 3) == 3: a(f"s_add_u32 s{s}, s{s}, 4096")
            return f
        self.mkload = mk
        for i in range(25): self.fill.append(mk(vr(self.W3 + 4 * i, 4), s3, i))
        for i in range(60): self.fill.append(mk(ar(4 * i, 4), s4, i))

    def red_setup(self):
        a = self.a; V = self.V; t = self.t
        self.vAo = V.alloc("vAo"); self.vRW = V.alloc("vRW"); self.vRR = V.alloc("vRR"); self.vRR2 = V.alloc("vRR2")
        self.vX = V.alloc("vX"); self.vX2 = V.alloc("vX2")
        a(f"v_lshlrev_b32 v{t[1]}, 9, v{self.vG4}"); a(f"v_lshl_add_u32 v{self.vAo}, v{self.vL15}, 4, v{t[1]}")
        a(f"v_mul_u32_u24 v{t[1]}, {RED_R}, v{self.vL15}"); a(f"v_lshl_add_u32 v{t[1]}, v{self.vG4}, 4, v{t[1]}")
        a(f"s_mul_i32 s{sT[0]}, s{sW}, {RED_W}"); a(f"v_add_u32 v{self.vRW}, s{sT[0]}, v{t[1]}")
        r8, c = t[2], t[3]
        a(f"v_and_b32 v{r8}, 7, v0"); a(f"v_lshrrev_b32 v{c}, 3, v0")
        a(f"s_lshl_b32 s{sT[0]}, s{sW}, 3"); a(f"v_add_u32 v{t[1]}, s{sT[0]}, v{r8}"); a(f"v_mul_u32_u24 v{t[1]}, {RED_R}, v{t[1]}")
        a(f"v_lshl_add_u32 v{self.vRR}, v{c}, 5, v{t[1]}")
        a(f"v_lshl_add_u32 v{self.vRR2}, v{c}, 3, v{t[1]}"); a(f"v_add_u32 v{self.vRR2}, 256, v{self.vRR2}")
        a(f"v_mul_u32_u24 v{t[1]}, 1280, v{r8}"); a(f"v_lshl_add_u32 v{self.vX}, v{c}, 4, v{t[1]}")
        a(f"v_lshl_add_u32 v{self.vX2}, v{c}, 2, v{t[1]}"); a(f"v_add_u32 v{self.vX2}, 128, v{self.vX2}")
        self.sXO = sF[15]; self.sRB32 = sF[16]
        a(f"s_lshl_b32 s{self.sRB32}, s{sG}, 2"); a(f"s_lshl_b32 s{sT[0]}, s{self.sRH}, 1"); a(f"s_add_u32 s{self.sRB32}, s{self.sRB32}, s{sT[0]}")
        a(f"s_lshl_b32 s{sT[0]}, s{self.sRB32}, 5"); a(f"s_lshl_b32 s{sT[1]}, s{sW}, 3"); a(f"s_add_u32 s{sT[0]}, s{sT[0]}, s{sT[1]}")
        a(f"s_mul_i32 s{self.sXO}, s{sT[0]}, 1280"); a(f"s_mul_i32 s{sT[0]}, s{self.sCB8}, 160"); a(f"s_add_u32 s{self.sXO}, s{self.sXO}, s{sT[0]}")

    def ks_gemm(self, nk, wreg, AF, ACC, sA):
        a = self.a
        for k in range(nk):
            for rt in range(2):
                a(f"buffer_load_dwordx4 {vr(AF+(k*2+rt)*4,4)}, v{self.vAo}, {srd(SWS)}, s{sA} offen offset:{rt*256+(k&1)*2048} sc1")
            if k & 1: a(f"s_add_u32 s{sA}, s{sA}, 4096")
        for k in range(nk):
            for rt in range(2):
                for tt in range(5):
                    D = vr(ACC + (rt * 5 + tt) * 4, 4)
                    a(f"v_mfma_f32_16x16x32_bf16 {D}, {wreg(k*5+tt)}, {vr(AF+(k*2+rt)*4,4)}, {'0' if k == 0 else D}")

    def reduce(self, ACC, scratch, R):
        a = self.a; t = self.t
        a(f"v_add_u32 v{t[1]}, {scratch}, v{self.vRW}")
        a(f"v_add_u32 v{t[2]}, {scratch}, v{self.vRR}")
        a(f"v_add_u32 v{t[3]}, {scratch}, v{self.vRR2}")
        for rt in range(2):
            for tt in range(5):
                a(f"ds_write_b128 v{t[1]}, {vr(ACC+(rt*5+tt)*4,4)} offset:{rt*16*RED_R+tt*64}")
        a("s_waitcnt lgkmcnt(0)")
        a("s_barrier")
        for s in range(4):
            a(f"ds_read_b128 {vr(ACC+8*s,4)}, v{t[2]} offset:{s*RED_W}")
            a(f"ds_read_b128 {vr(ACC+8*s+4,4)}, v{t[2]} offset:{s*RED_W+16}")
            a(f"ds_read_b64 {vr(ACC+32+2*s,2)}, v{t[3]} offset:{s*RED_W}")
        for i in range(0, 8, 2):
            a(f"v_pk_add_f32 {vr(ACC+i,2)}, {vr(ACC+i,2)}, {vr(ACC+8+i,2)}")
        a(f"v_pk_add_f32 {vr(ACC+32,2)}, {vr(ACC+32,2)}, {vr(ACC+34,2)}")
        for i in range(0, 8, 2):
            a(f"v_pk_add_f32 {vr(ACC+16+i,2)}, {vr(ACC+16+i,2)}, {vr(ACC+24+i,2)}")
        a(f"v_pk_add_f32 {vr(ACC+36,2)}, {vr(ACC+36,2)}, {vr(ACC+38,2)}")
        for i in range(0, 8, 2):
            a(f"v_pk_add_f32 {vr(R+i,2)}, {vr(ACC+i,2)}, {vr(ACC+16+i,2)}")
        a(f"v_pk_add_f32 {vr(R+8,2)}, {vr(ACC+32,2)}, {vr(ACC+36,2)}")

    def add_packed(self, R, src, T):
        a = self.a
        for d in range(5):
            a(f"v_lshlrev_b32 v{T+2*d}, 16, v{src+d}"); a(f"v_and_b32 v{T+2*d+1}, 0xffff0000, v{src+d}")
        for d in range(5):
            a(f"v_pk_add_f32 {vr(R+2*d,2)}, {vr(R+2*d,2)}, {vr(T+2*d,2)}")

    def p3(self):
        a = self.a; V = self.V; t = self.t
        self.red_setup()
        self.HK = V.alloc("HK", 16)
        XR = self.HK
        for hf in range(2):
            a(f"s_add_u32 s{sT[0]}, s{self.sXO}, {hf*32*1280}")
            a(f"buffer_load_dwordx4 {vr(XR+8*hf,4)}, v{self.vX}, {srd(SX)}, s{sT[0]} offen")
            a(f"buffer_load_dword v{XR+8*hf+4}, v{self.vX2}, {srd(SX)}, s{sT[0]} offen")
        self.drain_fill()
        FA = V.alloc("FA"); vH = V.alloc("vH"); vH2 = V.alloc("vH2"); vS2 = V.alloc("vS2")
        self.sWG0 = sF[17]
        a(f"s_and_b32 s{self.sWG0}, s2, 15")
        a(f"v_bfe_u32 v{t[1]}, v0, 1, 2"); a(f"v_lshlrev_b32 v{t[1]}, 11, v{t[1]}")
        a(f"v_and_b32 v{t[2]}, 1, v0"); a(f"v_lshl_add_u32 v{t[1]}, v{t[2]}, 3, v{t[1]}")
        a(f"s_lshl_b32 s{sT[0]}, s{sW}, 13"); a(f"s_lshl_b32 s{sT[1]}, s{self.sWG0}, 7"); a(f"s_add_u32 s{sT[0]}, s{sT[0]}, s{sT[1]}")
        a(f"s_lshl_b32 s{sT[1]}, s{self.sRH}, 4"); a(f"s_add_u32 s{sT[0]}, s{sT[0]}, s{sT[1]}")
        a(f"v_add_u32 v{FA}, s{sT[0]}, v{t[1]}")
        a(f"v_and_b32 v{t[1]}, 7, v0"); a(f"v_lshlrev_b32 v{t[1]}, 4, v{t[1]}"); a(f"v_lshrrev_b32 v{t[2]}, 3, v0")
        a(f"v_lshl_add_u32 v{vH}, v{t[2]}, 9, v{t[1]}")
        a(f"v_lshrrev_b32 v{t[3]}, 5, v0"); a(f"v_lshl_add_u32 v{vH2}, v{t[3]}, 9, v{t[1]}"); a(f"v_and_b32 v{t[2]}, 3, v{t[2]}")
        a(f"v_lshl_add_u32 v{vH2}, v{t[2]}, 2, v{vH2}"); a(f"v_add_u32 v{vH2}, 4096, v{vH2}")
        a(f"v_lshlrev_b32 v{vS2}, 2, v{t[1]}"); a(f"v_and_b32 v{t[2]}, 1, v{self.vG4}"); a(f"v_lshl_add_u32 v{vS2}, v{t[2]}, 2, v{vS2}")
        ACC = V.alloc("acc3", 40); AF = V.alloc("AF3", 40); R = V.alloc("R3", 10); T = AF
        for hf in range(2):
            self.poll(FA, 3 + hf)
            self.stamp(f'oseen{hf}')
            sA = sT[2]
            a(f"s_add_u32 s{sA}, s{self.sRB32}, {hf}"); a(f"s_mul_i32 s{sA}, s{sA}, {OH_RB}"); a(f"s_mov_b32 s{sT[3]}, s{sA}")
            a(f"s_mul_i32 s{sT[0]}, s{sW}, {20*512}"); a(f"s_add_u32 s{sA}, s{sA}, s{sT[0]}"); a(f"s_add_u32 s{sA}, s{sA}, {WS_O}")
            self.ks_gemm(5, lambda f: vr(self.W3 + 4 * f, 4), AF, ACC, sA)
            self.reduce(ACC, L_S3[hf], R)
            self.add_packed(R, XR + 8 * hf, T)
            HK = self.HK + 8 * hf
            for d in range(5): a(f"v_cvt_pk_bf16_f32 v{HK+d}, v{R+2*d}, v{R+2*d+1}")
            a(f"s_mul_i32 s{sT[0]}, s{self.sCB8}, 5120"); a(f"s_add_u32 s{sT[3]}, s{sT[3]}, s{sT[0]}")
            a(f"s_lshl_b32 s{sT[0]}, s{sW}, 7"); a(f"s_add_u32 s{sT[3]}, s{sT[3]}, s{sT[0]}"); a(f"s_add_u32 s{sT[3]}, s{sT[3]}, {WS_H}")
            a(f"buffer_store_dwordx4 {vr(HK,4)}, v{vH}, {srd(SWS)}, s{sT[3]} offen sc1")
            a(f"buffer_store_dword v{HK+4}, v{vH2}, {srd(SWS)}, s{sT[3]} offen sc1")
            a(f"v_pk_mul_f32 {vr(T,2)}, {vr(R,2)}, {vr(R,2)}")
            for d in range(1, 5): a(f"v_pk_fma_f32 {vr(T,2)}, {vr(R+2*d,2)}, {vr(R+2*d,2)}, {vr(T,2)}")
            for d in range(1, 5): a(f"v_pk_add_f32 {vr(R,2)}, {vr(R,2)}, {vr(R+2*d,2)}")
            a(f"v_add_f32 v{R}, v{R}, v{R+1}"); a(f"v_add_f32 v{T}, v{T}, v{T+1}")
            a(f"v_permlane16_swap_b32 v{R}, v{T}")
            a(f"v_add_f32 v{R}, v{R}, v{T}")
            a(f"v_add_f32_dpp v{R}, v{R}, v{R} row_ror:8 row_mask:0xf bank_mask:0xf")
            a(f"v_mov_b32 v{T}, v{R}")
            a(f"v_permlane32_swap_b32 v{R}, v{T}")
            a(f"v_add_f32 v{R}, v{R}, v{T}")
            a(f"s_add_u32 s{sT[0]}, s{self.sRB32}, {hf}"); a(f"s_lshl_b32 s{sT[0]}, s{sT[0]}, 11"); a(f"s_lshl_b32 s{sT[1]}, s{sW}, 9")
            a(f"s_add_u32 s{sT[0]}, s{sT[0]}, s{sT[1]}"); a(f"s_lshl_b32 s{sT[1]}, s{self.sCB8}, 3"); a(f"s_add_u32 s{sT[0]}, s{sT[0]}, s{sT[1]}")
            a(f"s_add_u32 s{sT[0]}, s{sT[0]}, {WS_ST2}")
            a("s_mov_b64 exec, 0x00ff00ff")
            a(f"buffer_store_dword v{R}, v{vS2}, {srd(SWS)}, s{sT[0]} offen sc1")
            a("s_mov_b64 exec, -1")
            self.flag(5 + hf)
            self.stamp(f'p3_{hf}')
        V.rel("acc3", "AF3", "R3", "FA", "vH", "vH2", "vS2", "W3")

    def p4(self):
        a = self.a; V = self.V; t = self.t
        E = self.emit_costed
        CS = V.alloc("cs4", 12); ON = V.alloc("on4", 4)
        for i in range(4): a(f"v_mov_b32 v{ON+i}, 0x3f803f80")
        for k in range(20):
            for tt in range(3):
                D = vr(CS + 4 * tt, 4)
                a(f"v_mfma_f32_16x16x32_bf16 {D}, {ar((k*3+tt)*4,4)}, {vr(ON,4)}, {'0' if k == 0 else D}")
        V.rel("on4")
        FA = V.alloc("FA")
        a(f"s_or_b32 s{sT[0]}, s2, s{sW}"); a(f"s_cmp_eq_u32 s{sT[0]}, 0"); a("s_cbranch_scc0 L_nobump")
        for x in range(4):
            a(f"v_lshlrev_b32 v{FA}, 7, v0"); a(f"v_add_u32 v{FA}, {x*8192}, v{FA}")
            self.poll(FA, 2)
        a(f"s_add_u32 s{sT[0]}, s{sE}, 16"); a(f"v_mov_b32 v{FA}, s{sT[0]}"); a(f"s_mov_b32 s{sT[0]}, {WS_EPOCH}")
        a("s_mov_b64 exec, 1")
        a(f"buffer_store_dword v{FA}, off, {srd(SWS)}, s{sT[0]} sc1")
        a("s_mov_b64 exec, -1")
        a("L_nobump:")
        a(f"v_lshrrev_b32 v{t[1]}, 2, v0"); a(f"v_lshlrev_b32 v{t[1]}, 11, v{t[1]}"); a(f"v_and_b32 v{t[2]}, 3, v0")
        a(f"v_lshl_add_u32 v{t[1]}, v{t[2]}, 3, v{t[1]}"); a(f"s_lshl_b32 s{sT[0]}, s{self.sWG0}, 7"); a(f"v_add_u32 v{FA}, s{sT[0]}, v{t[1]}")
        vSt = V.alloc("vSt"); vGs = V.alloc("vGs"); vHB = V.alloc("vHB", 2)
        a(f"v_lshrrev_b32 v{t[1]}, 1, v{self.vG4}"); a(f"v_and_b32 v{t[2]}, 1, v{self.vG4}")
        a(f"v_lshl_add_u32 v{t[3]}, v{t[2]}, 4, v{self.vL15}")
        a(f"v_lshl_add_u32 v{vSt}, v{t[1]}, 6, v{t[3]}"); a(f"v_lshlrev_b32 v{vSt}, 6, v{vSt}")
        a(f"v_mul_u32_u24 v{vGs}, {2*G_RB}, v{t[1]}"); a(f"v_lshl_add_u32 v{vGs}, v{t[3]}, 4, v{vGs}")
        ACC = V.alloc("acc4", 48); HF = [V.alloc("HF0", 16), V.alloc("HF1", 16)]
        SP = V.alloc("SP", 16); B3 = V.alloc("B3", 12); GP = V.alloc("GP", 12); TT = V.alloc("TT", 8)
        for hf in range(2):
            self.poll(FA, 5 + hf)
            self.stamp(f'hseen{hf}')
            sA = sT[2]; sM = sT[3]
            a(f"s_lshl_b32 s{sA}, s{sG}, 2"); a(f"s_and_b32 s{sT[0]}, s{sW}, 2"); a(f"s_add_u32 s{sA}, s{sA}, s{sT[0]}"); a(f"s_add_u32 s{sA}, s{sA}, {hf}")
            a(f"s_mul_i32 s{sA}, s{sA}, {OH_RB}"); a(f"s_and_b32 s{sT[0]}, s{sW}, 1"); a(f"s_mul_i32 s{sT[0]}, s{sT[0]}, 20480")
            a(f"s_add_u32 s{sA}, s{sA}, s{sT[0]}"); a(f"s_add_u32 s{sA}, s{sA}, {WS_H}")
            a(f"s_mul_i32 s{sM}, s{sW}, 20480")
            for i4 in range(5):
                a(f"s_add_u32 m0, s{sM}, {L_H[hf] + i4*4096}")
                for i in range(4):
                    a(f"buffer_load_dwordx4 v{self.vL16}, {srd(SWS)}, s{sA} offen offset:{i*1024} sc1 lds", tag='H')
                a(f"s_add_u32 s{sA}, s{sA}, 4096")
            a(f"s_lshl_b32 s{sT[0]}, s{sG}, 13"); a(f"s_add_u32 s{sT[0]}, s{sT[0]}, {WS_ST2 + hf*32*64}")
            for i in range(4):
                a(f"buffer_load_dwordx4 {vr(SP+4*i,4)}, v{vSt}, {srd(SWS)}, s{sT[0]} offen offset:{i*16} sc1")
            a(f"v_add_u32 v{vHB}, {L_H[hf]}, v{self.vAo}"); a(f"v_add_u32 v{vHB+1}, {L_H[hf]+40960}, v{self.vAo}")
            a.wait_vm_tag('H')
            a("s_barrier")
            self.stamp(f'hin{hf}')
            def rdH(k, b):
                for rt in range(4):
                    a(f"ds_read_b128 {vr(HF[b]+4*rt,4)}, v{vHB+(rt>>1)} offset:{k*2048+(rt&1)*256}")
            rdH(0, 0)
            for k in range(20):
                b = k & 1
                if k + 1 < 20: rdH(k + 1, b ^ 1)
                for rt in range(4):
                    for tt in range(3):
                        D = vr(ACC + (rt * 3 + tt) * 4, 4)
                        a(f"v_mfma_f32_16x16x32_bf16 {D}, {ar((k*3+tt)*4,4)}, {vr(HF[b]+4*rt,4)}, {'0' if k == 0 else D}")
                if hf == 1:
                    for tt in range(3): self.mkload(ar((k * 3 + tt) * 4, 4), self.s5, k * 3 + tt)()
            for i in range(1, 8): a(f"v_pk_add_f32 {vr(SP,2)}, {vr(SP,2)}, {vr(SP+2*i,2)}")
            a(f"v_mul_f32 v{B3}, {f32(-1/640):#x}, v{SP}")
            a(f"v_mul_f32 v{SP+1}, {f32(1/640):#x}, v{SP+1}")
            a(f"v_fma_f32 v{SP+1}, -v{B3}, v{B3}, v{SP+1}")
            a(f"v_add_f32 v{B3+8}, {f32(1e-5):#x}, v{SP+1}")
            a(f"v_rsq_f32 v{SP}, v{B3+8}")
            a(f"v_mul_f32 v{B3+4}, {f32(-LOG2E):#x}, v{SP}")
            for q in range(3):
                for i in range(1, 4): a(f"v_mov_b32 v{B3+4*q+i}, v{B3+4*q}")
            for q in range(3): self.tr4(B3 + 4 * q)
            for tt in range(3):
                for rt in range(4):
                    d = ACC + (rt * 3 + tt) * 4
                    nm, c1, ir = B3 + rt, B3 + 4 + rt, B3 + 8 + rt
                    for i in range(4): a(f"v_fma_f32 v{d+i}, v{nm}, v{CS+4*tt+i}, v{d+i}")
                    for i in range(2): a(f"v_mul_f32 v{TT+i}, v{c1}, v{d+i}")
                    for i in range(2): a(f"v_exp_f32 v{TT+i}, v{TT+i}")
                    for i in range(2): a(f"v_mul_f32 v{d+i}, v{d+i}, v{d+2+i}")
                    for i in range(2): a(f"v_fma_f32 v{TT+i}, v{TT+i}, v{ir}, v{ir}")
                    for i in range(2): a(f"v_rcp_f32 v{TT+i}, v{TT+i}")
                    for i in range(2): a(f"v_mul_f32 v{d+i}, v{d+i}, v{TT+i}")
                    a(f"v_cvt_pk_bf16_f32 v{GP+4*tt+rt}, v{d}, v{d+1}")
                self.tr4(GP + 4 * tt)
            a(f"s_lshl_b32 s{sT[0]}, s{sG}, 2"); a(f"s_add_u32 s{sT[0]}, s{sT[0]}, {hf}"); a(f"s_mul_i32 s{sT[0]}, s{sT[0]}, {G_RB}")
            a(f"s_lshl_b32 s{sT[1]}, s{sJ}, 2"); a(f"s_add_u32 s{sT[1]}, s{sT[1]}, s{sW}"); a(f"s_mul_i32 s{sT[1]}, s{sT[1]}, 1536")
            a(f"s_add_u32 s{sT[0]}, s{sT[0]}, s{sT[1]}"); a(f"s_add_u32 s{sT[0]}, s{sT[0]}, {WS_G}")
            for tt in range(3):
                a(f"buffer_store_dwordx4 {vr(GP+4*tt,4)}, v{vGs}, {srd(SWS)}, s{sT[0]} offen offset:{tt*512} sc1")
            self.flag(7 + hf)
            self.stamp(f'p4_{hf}')
        V.rel("cs4", "FA", "vSt", "vGs", "vHB", "acc4", "HF0", "HF1", "SP", "B3", "GP", "TT")

    def tr4(self, R):
        a = self.a
        a(f"v_permlane32_swap_b32 v{R}, v{R+2}"); a(f"v_permlane32_swap_b32 v{R+1}, v{R+3}")
        a(f"v_permlane16_swap_b32 v{R}, v{R+1}"); a(f"v_permlane16_swap_b32 v{R+2}, v{R+3}")

    def p5(self):
        a = self.a; V = self.V; t = self.t
        FA = V.alloc("FA")
        a(f"v_bfe_u32 v{t[1]}, v0, 2, 2"); a(f"v_lshlrev_b32 v{t[1]}, 11, v{t[1]}"); a(f"v_and_b32 v{t[2]}, 3, v0")
        a(f"v_lshl_add_u32 v{t[1]}, v{t[2]}, 3, v{t[1]}")
        a(f"s_lshl_b32 s{sT[0]}, s{sW}, 13"); a(f"s_lshl_b32 s{sT[1]}, s{self.sWG0}, 7"); a(f"s_add_u32 s{sT[0]}, s{sT[0]}, s{sT[1]}")
        a(f"v_add_u32 v{FA}, s{sT[0]}, v{t[1]}")
        ACC = V.alloc("acc5", 40); AF = V.alloc("AF5", 96); R = V.alloc("R5", 10); T = V.alloc("T5", 10)
        for hf in range(2):
            self.poll(FA, 7 + hf)
            self.stamp(f'gseen{hf}')
            sA = sT[2]
            a(f"s_add_u32 s{sA}, s{self.sRB32}, {hf}"); a(f"s_mul_i32 s{sA}, s{sA}, {G_RB}")
            a(f"s_mul_i32 s{sT[0]}, s{sW}, {48*512}"); a(f"s_add_u32 s{sA}, s{sA}, s{sT[0]}"); a(f"s_add_u32 s{sA}, s{sA}, {WS_G}")
            self.ks_gemm(12, lambda f: ar(4 * f, 4), AF, ACC, sA)
            self.reduce(ACC, L_S5[hf], R)
            self.add_packed(R, self.HK + 8 * hf, T)
            for d in range(5): a(f"v_cvt_pk_bf16_f32 v{T+d}, v{R+2*d}, v{R+2*d+1}")
            a(f"s_add_u32 s{sT[0]}, s{self.sXO}, {hf*32*1280}")
            a(f"buffer_store_dwordx4 {vr(T,4)}, v{self.vX}, {srd(SOUT)}, s{sT[0]} offen")
            a(f"buffer_store_dword v{T+4}, v{self.vX2}, {srd(SOUT)}, s{sT[0]} offen")
            self.stamp(f'p5_{hf}')

    def build(self):
        a = self.a
        self.prologue()
        self.p1()
        self.prep()
        phases = [self.p2, self.p3, self.p4, self.p5]
        for i, ph in enumerate(phases):
            if self.stop <= i + 1: break
            ph()
        a("L_finish:")
        if self.ts:
            a("s_waitcnt vmcnt(0)")
            self.stamp('end')
            a(f"s_lshl_b32 s{sT[0]}, s2, 10"); a(f"s_lshl_b32 s{sT[1]}, s{sW}, 8"); a(f"s_add_u32 s{sT[0]}, s{sT[0]}, s{sT[1]}")
            a(f"s_add_u32 s{sT[0]}, s{sT[0]}, {WS_TS}"); a(f"v_lshlrev_b32 v1, 2, v0")
            a(f"buffer_store_dword v255, v1, {srd(SWS)}, s{sT[0]} offen")
        a("L_end:")
        a("s_endpgm")
        a("L_codeend:")
        from emit import Ins
        a.ins[self.pf_pos] = Ins(f"s_min_u32 s{sT[0]}, s{sT[0]}, (L_codeend - L_nodma - 384)")
        a.finalize()
        hdr = ["; generated by gen/gen.py -- fused preLN sliding-window attention + SwiGLU block",
               "; @launch grid=(256,1,1) block=(256,1,1) lds=163840",
               '.amdgcn_target "amdgcn-amd-amdhsa--gfx950"', ".text", f".globl {NAME}", ".p2align 8",
               f".type {NAME},@function", f"{NAME}:"]
        ftr = ['.section .rodata,"a"', ".p2align 6", f".amdhsa_kernel {NAME}", "  .amdhsa_next_free_vgpr 512",
               "  .amdhsa_next_free_sgpr 102", "  .amdhsa_accum_offset 256", "  .amdhsa_group_segment_fixed_size 0",
               "  .amdhsa_kernarg_size 80", "  .amdhsa_user_sgpr_count 2", "  .amdhsa_user_sgpr_kernarg_segment_ptr 1",
               "  .amdhsa_system_sgpr_workgroup_id_x 1", ".end_amdhsa_kernel"]
        return "\n".join(hdr) + "\n" + a.text() + "\n".join(ftr) + "\n"

if __name__ == "__main__":
    import argparse
    ap = argparse.ArgumentParser()
    ap.add_argument("out"); ap.add_argument("--stop", type=int, default=99); ap.add_argument("--ts", action="store_true")
    ap.add_argument("--map1", default="row")
    o = ap.parse_args()
    g = Gen(stop=o.stop, ts=o.ts, map1=o.map1)
    txt = g.build()
    open(o.out, "w").write(txt)
    if o.ts: open(o.out + ".ts", "w").write(" ".join(g.tsnames))
```

```python
import sys, os, math, struct
sys.path.insert(0, os.path.dirname(os.path.abspath(__file__)))
from emit import Asm

NAME = "sequential_preLN__sliding_block__glu_gated_swiglu__prompt_kernel"

WS_EPOCH = 0x8000
WS_NM = 0x10000
WS_RS = 0x12000
WS_QKV = 0x100000; QKV_RB = 240 * 512
WS_O = 0x900000; OH_RB = 80 * 512
WS_H = 0xC00000
WS_G = 0x1000000; G_RB = 192 * 512
WS_ST2 = 0x1600000
WS_W3F = 0x1700000
WS_W4F = 0x1800000
WS_W5F = 0x1C00000
WS_TS = 0x1F00000
WS_SIZE = 0x10000000
TAGC = 0x5bd1e995

L_PREP = 131072
KVT = 2576
L_K = 0
L_V = 12 * KVT
L_S3 = (77824, 120832)
L_H = (0, 81920)
L_S5 = (0, 43008)
RED_W = 10752
RED_R = 336

def f32(x): return struct.unpack('<I', struct.pack('<f', x))[0]
LOG2E = 1.4426950408889634

sW = 3
SX, SWQ, SWS, SOUT, SP1, SP2 = 24, 28, 32, 36, 40, 44
sE, sEH = 48, 49
sG, sJ, sRB, sCB = 50, 51, 52, 53
sFLAG = 54
sT = list(range(55, 64))
SM = 64
sU = list(range(96, 102))
sF = list(range(4, 22))

def srd(b): return f"s[{b}:{b+3}]"
def vr(b, n=1): return f"v{b}" if n == 1 else f"v[{b}:{b+n-1}]"
def ar(b, n=1): return f"a{b}" if n == 1 else f"a[{b}:{b+n-1}]"

class VA:
    def __init__(self, lo, hi):
        self.free = [True] * 256
        for i in range(256):
            if i < lo or i >= hi: self.free[i] = False
        self.names = {}
    def alloc(self, name, n=1, align=None):
        if align is None: align = 4 if n >= 4 else (2 if n >= 2 else 1)
        for b in range(0, 256 - n + 1, align):
            if all(self.free[b:b + n]):
                for i in range(b, b + n): self.free[i] = False
                assert name not in self.names, name
                self.names[name] = (b, n)
                return b
        raise RuntimeError(f"out of VGPRs for {name} ({n}); live: {self.names}")
    def rel(self, *names):
        for name in names:
            b, n = self.names.pop(name)
            for i in range(b, b + n): self.free[i] = True

class Gen:
    def __init__(self, stop=99, ts=False, map1='row', opts=None):
        self.a = Asm(); self.stop = stop; self.ts = ts; self.map1 = map1
        self.V = VA(1, 255 if ts else 256)
        self.fill = []; self.fill_on = False; self.fill_period = 100; self.fill_next = 0
        self.clk = 0; self.pipe = 0; self.acts = []; self.inact = False
        self.o = opts or {}
        self.nts = 0

    def stamp(self, name=''):
        if not self.ts: return
        a = self.a
        a(f"s_memtime s[100:101]")
        a("s_waitcnt lgkmcnt(0)")
        a(f"v_writelane_b32 v255, s100, {self.nts}")
        self.tsnames = getattr(self, 'tsnames', []); self.tsnames.append(name)
        self.nts += 1

    def E(self, text, tag=None):
        self.a(text, tag=tag)
        mn = text.split()[0]
        if mn.startswith('v_mfma'):
            st = max(self.clk, self.pipe); self.pipe = st + (32 if '32x32' in mn else 16); self.clk = st + 8
        elif mn.startswith(('v_exp', 'v_rcp', 'v_rsq')): self.clk += 8
        elif mn.startswith('buffer'): self.clk += 8
        else: self.clk += 4
        if self.inact: return
        self.inact = True
        while self.acts and self.acts[0][0] <= self.clk:
            self.acts.pop(0)[1]()
        while self.fill and self.fill_on and self.clk >= self.fill_next:
            self.fill_next = max(self.fill_next, self.clk - self.fill_period) + self.fill_period
            self.fill.pop(0)(); self.clk += 8
        self.inact = False
    def at(self, delay, fn):
        self.acts.append((self.clk + delay, fn)); self.acts.sort(key=lambda x: x[0])
    def flush_acts(self):
        self.inact = True
        while self.acts: self.acts.pop(0)[1]()
        self.inact = False
    def fill_start(self, period):
        self.fill_on = True; self.fill_period = period; self.fill_next = self.clk
    def drain_fill(self, n=10**9):
        while self.fill and n > 0:
            self.fill.pop(0)(); n -= 1

    def interleave(self, valu, mf, lead=0):
        cost = [8 if t.split()[0].startswith(('v_exp', 'v_rcp', 'v_rsq')) else 4 for t in valu]
        tot = sum(cost); n = len(mf); k = 0; cum = 0
        for t, c in zip(valu, cost):
            while k < n and cum >= (k * tot) / n - lead:
                for x in mf[k]: self.E(x)
                k += 1
            self.E(t); cum += c
        while k < n:
            for x in mf[k]: self.E(x)
            k += 1

    def weave(self, main, side):
        for m in main:
            if callable(m): m(); continue
            self.E(m)
            if m.startswith('v_mfma'):
                while side and self.clk + 4 <= self.pipe:
                    x = side.pop(0)
                    if callable(x): x()
                    else: self.E(x)

    def flag(self, stage, tag=None):
        a = self.a; F = self.vF
        if tag is None: a("s_waitcnt vmcnt(0)")
        else: a.wait_vm_tag(tag)
        a(f"s_add_u32 s{sU[0]}, s{sE}, {stage}")
        a(f"v_mov_b32 v{F}, s{sU[0]}")
        a("s_mov_b64 exec, 1")
        a(f"buffer_store_dwordx2 {vr(F,2)}, off, {srd(SWS)}, s{sFLAG} sc1")
        a("s_mov_b64 exec, -1")
        self.clk += 24

    def poll_issue(self, vaddr, P=None):
        P = self.vP if P is None else P
        self.a(f"buffer_load_dwordx2 {vr(P,2)}, v{vaddr}, {srd(SWS)}, 0 offen sc1", tag=f'poll{P}')
        self.clk += 8

    def _ptest(self, P, stage, raw):
        a = self.a.raw if raw else self.a
        a(f"v_subrev_u32 v{P}, s{sU[0]}, v{P}")
        a(f"v_xor_b32 v{P+1}, s{sEH}, v{P+1}")
        a(f"v_lshrrev_b32 v{P}, 4, v{P}")
        a(f"v_or_b32 v{P}, v{P}, v{P+1}")
        a(f"v_cmp_ne_u32 vcc, 0, v{P}")

    def poll_check(self, vaddr, stage, P=None):
        a = self.a; P = self.vP if P is None else P
        L = a.lbl("L_poll"); C = a.lbl("L_pchk"); D = a.lbl("L_pdone")
        a(f"s_add_u32 s{sU[0]}, s{sE}, {stage}")
        a(f"s_mov_b32 s{sU[1]}, 0")
        a.wait_vm_tag(f'poll{P}')
        a.raw(f"s_branch {C}")
        a.raw(f"{L}:")
        a.raw(f"buffer_load_dwordx2 {vr(P,2)}, v{vaddr}, {srd(SWS)}, 0 offen sc1")
        a.raw(f"s_add_u32 s{sU[1]}, s{sU[1]}, 1")
        a.raw("s_waitcnt vmcnt(0)")
        a.raw(f"{C}:")
        self._ptest(P, stage, True)
        a.raw(f"s_cbranch_vccz {D}")
        a.raw(f"s_cmp_lt_u32 s{sU[1]}, 0x8000")
        a.raw(f"s_cbranch_scc1 {L}")
        a.raw(f"{D}:")
        self.clk += 48

    def poll_try(self, stage, notready, P=None):
        a = self.a; P = self.vP if P is None else P
        a(f"s_add_u32 s{sU[0]}, s{sE}, {stage}")
        a.wait_vm_tag(f'poll{P}')
        self._ptest(P, stage, False)
        a(f"s_cbranch_vccnz {notready}")
        self.clk += 32

    def poll(self, vaddr, stage, P=None):
        self.poll_issue(vaddr, P); self.poll_check(vaddr, stage, P)

    def wg_of_p1(self, vd, vrb, vcb, vt):
        a = self.a
        if self.map1 == 'row':
            a(f"v_lshrrev_b32 v{vd}, 1, v{vrb}")
            a(f"v_and_b32 v{vt}, 1, v{vrb}")
            a(f"v_lshl_or_b32 v{vd}, v{vt}, 3, v{vd}")
            a(f"v_lshl_or_b32 v{vd}, v{vcb}, 4, v{vd}")
        else:
            a(f"v_lshrrev_b32 v{vd}, 2, v{vrb}")
            a(f"v_lshrrev_b32 v{vt}, 3, v{vcb}")
            a(f"v_lshl_or_b32 v{vd}, v{vt}, 2, v{vd}")
            a(f"v_and_b32 v{vt}, 3, v{vrb}")
            a(f"v_lshl_or_b32 v{vd}, v{vt}, 3, v{vd}")
            a(f"v_and_b32 v{vt}, 7, v{vcb}")
            a(f"v_lshl_or_b32 v{vd}, v{vt}, 5, v{vd}")

    def finish(self):
        a = self.a
        a("s_branch L_finish")

    def prologue(self):
        a = self.a; V = self.V
        a("s_cmp_ge_u32 s2, 256")
        a("s_cbranch_scc1 L_end")
        a("s_load_dwordx16 s[4:19], s[0:1], 0")
        a("s_load_dwordx4 s[20:23], s[0:1], 64")
        if self.ts:
            a("v_mov_b32 v255, 0")
        t = [V.alloc(f"t{i}") for i in range(6)]; self.t = t
        self.vF = V.alloc("vF", 2); self.vP = V.alloc("vP", 2)
        a(f"v_lshrrev_b32 v{t[0]}, 6, v0")
        a("v_and_b32 v0, 63, v0")
        a(f"v_readfirstlane_b32 s{sW}, v{t[0]}")
        a(f"s_and_b32 s{sG}, s2, 7"); a(f"s_lshl_b32 s{sG}, s{sG}, 1")
        a(f"s_bfe_u32 s{sT[0]}, s2, 0x10003"); a(f"s_add_u32 s{sG}, s{sG}, s{sT[0]}")
        a(f"s_lshr_b32 s{sJ}, s2, 4")
        if self.map1 == 'row':
            a(f"s_mov_b32 s{sRB}, s{sG}"); a(f"s_mov_b32 s{sCB}, s{sJ}")
        else:
            a(f"s_and_b32 s{sRB}, s2, 3"); a(f"s_lshl_b32 s{sRB}, s{sRB}, 2")
            a(f"s_bfe_u32 s{sT[0]}, s2, 0x20003"); a(f"s_add_u32 s{sRB}, s{sRB}, s{sT[0]}")
            a(f"s_bfe_u32 s{sCB}, s2, 0x10002"); a(f"s_lshl_b32 s{sCB}, s{sCB}, 3")
            a(f"s_lshr_b32 s{sT[0]}, s2, 5"); a(f"s_add_u32 s{sCB}, s{sCB}, s{sT[0]}")
        a(f"s_lshl_b32 s{sFLAG}, s2, 7"); a(f"s_lshl_b32 s{sT[0]}, s{sW}, 3"); a(f"s_add_u32 s{sFLAG}, s{sFLAG}, s{sT[0]}")
        self.vL15 = V.alloc("l15"); self.vG4 = V.alloc("g4"); self.vL16 = V.alloc("l16")
        a(f"v_and_b32 v{self.vL15}, 15, v0"); a(f"v_lshrrev_b32 v{self.vG4}, 4, v0"); a(f"v_lshlrev_b32 v{self.vL16}, 4, v0")
        DA = V.alloc("DA", 4); DB = V.alloc("DB", 4); self.DA, self.DB = DA, DB
        wv = t[0]
        a(f"v_lshrrev_b32 v{t[1]}, 3, v0"); a(f"v_lshl_add_u32 v{t[1]}, v{wv}, 5, v{t[1]}")
        a(f"v_mul_u32_u24 v{t[1]}, 1280, v{t[1]}")
        a(f"v_and_b32 v{t[2]}, 7, v0"); a(f"v_xor_b32 v{t[2]}, v{t[2]}, v{self.vG4}")
        a(f"v_lshl_add_u32 v{DA}, v{t[2]}, 4, v{t[1]}")
        a(f"v_xor_b32 v{t[2]}, 4, v{t[2]}")
        a(f"v_lshl_add_u32 v{DA+1}, v{t[2]}, 4, v{t[1]}")
        a(f"v_add_u32 v{DA+2}, {16*1280 - 2048}, v{DA}")
        a(f"v_add_u32 v{DA+3}, {24*1280 - 3072}, v{DA+1}")
        a(f"v_add_u32 v{DA+1}, {8*1280 - 1024}, v{DA+1}")
        a(f"v_lshl_add_u32 v{t[1]}, v{wv}, 4, v{self.vG4}")
        a(f"v_mul_u32_u24 v{t[1]}, 3840, v{t[1]}")
        a(f"v_and_b32 v{t[3]}, 1, v0"); a(f"v_lshl_add_u32 v{t[1]}, v{t[3]}, 4, v{t[1]}")
        a(f"v_lshrrev_b32 v{t[2]}, 1, v{self.vL15}"); a(f"v_xor_b32 v{t[2]}, v{t[2]}, v{self.vG4}")
        a(f"v_lshl_add_u32 v{DB}, v{t[2]}, 5, v{t[1]}")
        a(f"v_xor_b32 v{t[2]}, 4, v{t[2]}")
        a(f"v_lshl_add_u32 v{DB+2}, v{t[2]}, 5, v{t[1]}")
        a(f"v_add_u32 v{DB+1}, {4*3840 - 1024}, v{DB}")
        a(f"v_add_u32 v{DB+3}, {12*3840 - 3072}, v{DB+2}")
        a(f"v_add_u32 v{DB+2}, {8*3840 - 2048}, v{DB+2}")
        sK, sOA, sOB, sSW = 64, 65, 66, 67
        self.sK, self.sOA, self.sOB, self.sSW = sK, sOA, sOB, sSW
        rot = self.o.get('rot', 1)
        if rot == 0:
            a(f"s_add_u32 s{sK}, s{sRB}, s{sCB}")
        elif self.map1 == 'row':
            a(f"s_and_b32 s{sK}, s{sRB}, 1"); a(f"s_mul_i32 s{sK}, s{sK}, 5"); a(f"s_lshr_b32 s{sT[0]}, s{sRB}, 1")
            a(f"s_add_u32 s{sK}, s{sK}, s{sT[0]}"); a(f"s_add_u32 s{sK}, s{sK}, s{sCB}")
        else:
            a(f"s_and_b32 s{sK}, s{sRB}, 3"); a(f"s_mul_i32 s{sK}, s{sK}, 5"); a(f"s_add_u32 s{sK}, s{sK}, 1"); a(f"s_lshr_b32 s{sK}, s{sK}, 1")
            a(f"s_lshr_b32 s{sT[0]}, s{sRB}, 2"); a(f"s_add_u32 s{sK}, s{sK}, s{sT[0]}"); a(f"s_add_u32 s{sK}, s{sK}, s{sCB}")
        a(f"s_mul_i32 s{sT[0]}, s{sK}, 26"); a(f"s_lshr_b32 s{sT[0]}, s{sT[0]}, 8")
        assert all((k * 26) >> 8 == k // 10 for k in range(39))
        a(f"s_mul_i32 s{sT[0]}, s{sT[0]}, 10"); a(f"s_sub_u32 s{sK}, s{sK}, s{sT[0]}")
        a(f"s_mul_i32 s{sOA}, s{sRB}, {128*1280}"); a(f"s_lshl_b32 s{sT[0]}, s{sK}, 7"); a(f"s_add_u32 s{sOA}, s{sOA}, s{sT[0]}")
        a(f"s_mul_i32 s{sOB}, s{sK}, {64*3840}"); a(f"s_lshl_b32 s{sT[0]}, s{sCB}, 8"); a(f"s_add_u32 s{sOB}, s{sOB}, s{sT[0]}")
        a(f"s_lshl_b32 s{sSW}, s{sW}, 12")
        a(f"s_mov_b32 s{SX+2}, {2048*1280}"); a(f"s_mov_b32 s{SX+3}, 0x20000"); a(f"s_mov_b32 s{SWQ+2}, {640*3840}"); a(f"s_mov_b32 s{SWQ+3}, 0x20000")
        a("s_waitcnt lgkmcnt(0)")
        def mk(d, p, n):
            a(f"s_mov_b64 s[{d}:{d+1}], s[{p}:{p+1}]"); a(f"s_mov_b32 s{d+2}, {n}"); a(f"s_mov_b32 s{d+3}, 0x20000")
        a(f"s_mov_b64 s[{SX}:{SX+1}], s[4:5]"); a(f"s_mov_b64 s[{SWQ}:{SWQ+1}], s[6:7]")
        a(f"s_load_dwordx2 s[{sE}:{sEH}], s[22:23], {WS_EPOCH}")
        a(f"s_cmp_eq_u32 s{sCB}, 15")
        a("s_cbranch_scc1 L_nodma")
        a(f"s_mov_b32 s68, 0")
        a("L_dma0:")
        self.p1_dma()
        a("s_add_u32 s68, s68, 1"); a("s_cmp_lt_u32 s68, 3"); a("s_cbranch_scc1 L_dma0")
        a("L_nodma:")
        mk(SWS, 22, WS_SIZE); mk(SOUT, 18, 2048 * 1280)
        pq = [sT[5], sT[6], sT[7], sT[8], sU[2], sU[3]]
        self.pq = pq
        a(f"s_cmp_lt_u32 s{sJ}, 10"); a("s_cbranch_scc0 L_pp1")
        mk(SP1, 12, 640 * 3072); mk(SP2, 14, 640 * 3072)
        a(f"s_mov_b32 s{pq[0]}, 0"); a(f"s_mov_b32 s{pq[1]}, 12288"); a(f"s_mov_b32 s{pq[2]}, 11")
        a(f"s_mov_b32 s{pq[3]}, 5462"); a(f"s_mov_b32 s{pq[4]}, {3072 - 192}")
        a(f"s_mul_i32 s{pq[5]}, s{sJ}, {64*3072}"); a(f"s_and_b32 s{sT[0]}, s2, 15"); a(f"s_mul_i32 s{sT[0]}, s{sT[0]}, 192")
        a(f"s_add_u32 s{pq[5]}, s{pq[5]}, s{sT[0]}")
        a("s_branch L_pp3")
        a("L_pp1:")
        a(f"s_cmp_lt_u32 s{sJ}, 14"); a("s_cbranch_scc0 L_pp2")
        mk(SP1, 16, 1536 * 1280); mk(SP2, 16, 1536 * 1280)
        a(f"s_mov_b32 s{pq[0]}, 16"); a(f"s_mov_b32 s{pq[1]}, 0"); a(f"s_mov_b32 s{pq[2]}, 29")
        a(f"s_mov_b32 s{pq[3]}, 3277"); a(f"s_mov_b32 s{pq[4]}, {1280 - 320}")
        a(f"s_sub_u32 s{sT[0]}, s2, 160"); a(f"s_lshr_b32 s{pq[5]}, s{sT[0]}, 2"); a(f"s_mul_i32 s{pq[5]}, s{pq[5]}, {96*1280}")
        a(f"s_and_b32 s{sT[0]}, s{sT[0]}, 3"); a(f"s_mul_i32 s{sT[0]}, s{sT[0]}, 320"); a(f"s_add_u32 s{pq[5]}, s{pq[5]}, s{sT[0]}")
        a("s_branch L_pp3")
        a("L_pp2:")
        mk(SP1, 8, 640 * 1280); mk(SP2, 8, 640 * 1280)
        a(f"s_mov_b32 s{pq[0]}, 16"); a(f"s_mov_b32 s{pq[1]}, 0"); a(f"s_mov_b32 s{pq[2]}, 24")
        a(f"s_mov_b32 s{pq[3]}, 6554"); a(f"s_mov_b32 s{pq[4]}, {1280 - 160}")
        a(f"s_bfe_u32 s{pq[5]}, s2, 0x20003"); a(f"s_mul_i32 s{pq[5]}, s{pq[5]}, {160*1280}")
        a(f"s_and_b32 s{sT[0]}, s2, 7"); a(f"s_mul_i32 s{sT[0]}, s{sT[0]}, 160"); a(f"s_add_u32 s{pq[5]}, s{pq[5]}, s{sT[0]}")
        a("L_pp3:")
        for L, m, n in ((12, 5462, 768), (20, 3277, 1920), (10, 6554, 1600)):
            assert all((u * m) >> 16 == u // L for u in range(n))
        self.prep_dma()
        a("L_pf:")
        a("s_getpc_b64 s[96:97]")
        a(f"s_lshr_b32 s{sT[0]}, s2, 3"); a(f"s_lshl_b32 s{sT[0]}, s{sT[0]}, 2"); a(f"s_add_u32 s{sT[0]}, s{sT[0]}, s{sW}")
        a(f"s_lshl_b32 s{sT[0]}, s{sT[0]}, 9")
        self.pf_pos = len(a.ins)
        a(f"s_min_u32 s{sT[0]}, s{sT[0]}, 0")
        a(f"v_lshl_add_u32 v{t[1]}, v0, 3, s{sT[0]}")
        a(f"global_load_dwordx2 {vr(self.vP,2)}, v{t[1]}, s[96:97]", tag='pf')
        a("s_waitcnt lgkmcnt(0)")
        a(f"s_xor_b32 s{sEH}, s{sEH}, {TAGC}")
        a(f"v_mov_b32 v{self.vF+1}, s{sEH}")
        self.sCB8, self.sRH, self.sWG0 = sF[10], sF[11], sF[17]
        a(f"s_and_b32 s{self.sCB8}, s{sJ}, 7"); a(f"s_lshr_b32 s{self.sRH}, s{sJ}, 3"); a(f"s_and_b32 s{self.sWG0}, s2, 15")
        self.stamp('prol')

    def p1_dma(self):
        a = self.a
        a(f"s_mov_b32 m0, s{self.sSW}")
        for i in range(4):
            a(f"buffer_load_dwordx4 v{self.DA+i}, {srd(SX)}, s{self.sOA} offen offset:{i*1024} lds", tag='p1')
        a(f"s_add_u32 m0, s{self.sSW}, 16384")
        for i in range(4):
            a(f"buffer_load_dwordx4 v{self.DB+i}, {srd(SWQ)}, s{self.sOB} offen offset:{i*1024} lds", tag='p1')
        a(f"s_add_u32 s{self.sSW}, s{self.sSW}, 32768"); a(f"s_and_b32 s{self.sSW}, s{self.sSW}, 0x1ffff")
        a(f"s_add_u32 s{self.sK}, s{self.sK}, 1"); a(f"s_cmp_eq_u32 s{self.sK}, 10")
        a(f"s_cselect_b32 s{sT[0]}, 1280, 0"); a(f"s_cselect_b32 s{sT[1]}, {640*3840}, 0")
        a(f"s_add_u32 s{self.sOA}, s{self.sOA}, 128"); a(f"s_add_u32 s{self.sOB}, s{self.sOB}, {64*3840}")
        a(f"s_sub_u32 s{self.sOA}, s{self.sOA}, s{sT[0]}"); a(f"s_sub_u32 s{self.sOB}, s{self.sOB}, s{sT[1]}")

    def prep_dma(self):
        a = self.a; t = self.t; pq = self.pq
        for i in range(8):
            q = sU[0]
            a(f"s_add_u32 s{q}, s{sW}, {4*(i&3)}")
            if i >= 4: a(f"s_add_u32 s{q}, s{q}, s{pq[0]}")
            a(f"s_min_u32 s{q}, s{q}, s{pq[2]}")
            a(f"s_lshl_b32 s{sU[1]}, s{q}, 6")
            a(f"v_add_u32 v{t[1]}, s{sU[1]}, v0")
            a(f"v_mul_u32_u24 v{t[2]}, s{pq[3]}, v{t[1]}")
            a(f"v_lshrrev_b32 v{t[2]}, 16, v{t[2]}")
            a(f"v_lshlrev_b32 v{t[1]}, 4, v{t[1]}")
            a(f"v_mad_u32_u24 v{t[1]}, v{t[2]}, s{pq[4]}, v{t[1]}")
            a(f"s_lshl_b32 s{q}, s{q}, 10"); a(f"s_add_u32 s{q}, s{q}, {L_PREP}")
            if i >= 4: a(f"s_add_u32 s{q}, s{q}, s{pq[1]}")
            a(f"s_mov_b32 m0, s{q}")
            a(f"buffer_load_dwordx4 v{t[1]}, {srd(SP1 if i < 4 else SP2)}, s{pq[5]} offen lds", tag='prep')

    def prepflag_addr(self, d):
        a = self.a; t = self.t
        a(f"v_min_u32 v{t[1]}, 9, v0"); a(f"v_lshlrev_b32 v{t[1]}, 11, v{t[1]}")
        a(f"s_lshl_b32 s{sT[0]}, s{sJ}, 7"); a(f"s_lshl_b32 s{sT[1]}, s{sW}, 3"); a(f"s_add_u32 s{sT[0]}, s{sT[0]}, s{sT[1]}")
        a(f"v_add_u32 v{t[1]}, s{sT[0]}, v{t[1]}")
        a(f"v_and_b32 v{t[2]}, 3, v0"); a(f"v_lshlrev_b32 v{t[2]}, 3, v{t[2]}")
        a(f"v_bfe_u32 v{t[3]}, v0, 2, 2"); a(f"v_lshl_add_u32 v{t[3]}, v{t[3]}, 9, v{t[2]}")
        a(f"s_lshl_b32 s{sT[0]}, s{sW}, 4"); a(f"s_lshr_b32 s{sT[1]}, s{self.sCB8}, 1"); a(f"s_add_u32 s{sT[0]}, s{sT[0]}, s{sT[1]}")
        a(f"s_add_u32 s{sT[0]}, s{sT[0]}, 160"); a(f"s_lshl_b32 s{sT[0]}, s{sT[0]}, 7"); a(f"v_add_u32 v{t[3]}, s{sT[0]}, v{t[3]}")
        a(f"s_lshl_b32 s{sT[0]}, s{sW}, 3"); a(f"s_add_u32 s{sT[0]}, s{sT[0]}, s{self.sCB8}"); a(f"s_add_u32 s{sT[0]}, s{sT[0]}, 224")
        a(f"s_lshl_b32 s{sT[0]}, s{sT[0]}, 7"); a(f"v_add_u32 v{t[2]}, s{sT[0]}, v{t[2]}")
        a(f"v_cmp_gt_u32 vcc, 16, v0"); a(f"v_cndmask_b32 v{t[1]}, v{t[3]}, v{t[1]}, vcc")
        a(f"v_cmp_gt_u32 vcc, 32, v0"); a(f"v_cndmask_b32 v{d}, v{t[2]}, v{t[1]}, vcc")

    def p1(self):
        a = self.a; V = self.V; t = self.t
        self.vPFA = V.alloc("PFA"); SFA = V.alloc("SFA")
        ACC = V.alloc("acc", 64); CS = V.alloc("cs", 8); ONES = V.alloc("ones", 4)
        AF = V.alloc("AF", 64); BF = V.alloc("BF", 16)
        RA = V.alloc("RA", 4); CA = V.alloc("CA", 4)
        ST = V.alloc("ST", 64)
        sIT, sSR, sNM, sRS = 68, 69, 70, 71
        self.prepflag_addr(self.vPFA)
        a(f"s_lshl_b32 s{sNM}, s{sRB}, 9"); a(f"s_add_u32 s{sNM}, s{sNM}, {WS_NM}"); a(f"s_add_u32 s{sRS}, s{sNM}, {WS_RS-WS_NM}")
        a(f"v_mov_b32 v{t[1]}, s{sRB}"); a(f"v_mov_b32 v{t[2]}, 15")
        self.wg_of_p1(SFA, t[1], t[2], t[4])
        a(f"v_lshlrev_b32 v{SFA}, 7, v{SFA}"); a(f"v_and_b32 v{t[1]}, 3, v0"); a(f"v_lshl_add_u32 v{SFA}, v{t[1]}, 3, v{SFA}")
        a(f"s_cmp_eq_u32 s{sCB}, 15"); a("s_cbranch_scc1 L_spare")
        a(f"v_lshrrev_b32 v{t[1]}, 1, v{self.vL15}"); a(f"v_xor_b32 v{t[1]}, v{t[1]}, v{self.vG4}")
        a(f"v_lshlrev_b32 v{t[1]}, 4, v{t[1]}"); a(f"v_lshl_add_u32 v{RA}, v{self.vL15}, 7, v{t[1]}")
        a(f"v_xor_b32 v{RA+1}, 64, v{RA}")
        a(f"v_bfe_u32 v{t[1]}, v0, 2, 2"); a(f"v_and_b32 v{t[2]}, 1, v{self.vG4}"); a(f"v_lshl_or_b32 v{t[2]}, v{t[2]}, 2, v{t[1]}")
        a(f"s_lshl_b32 s{sT[0]}, s{sW}, 1"); a(f"v_xor_b32 v{t[2]}, s{sT[0]}, v{t[2]}")
        a(f"v_lshl_add_u32 v{t[1]}, v{self.vG4}, 3, v{t[1]}"); a(f"v_lshlrev_b32 v{t[1]}, 8, v{t[1]}")
        a(f"v_lshl_add_u32 v{t[1]}, v{t[2]}, 5, v{t[1]}")
        a(f"v_and_b32 v{t[2]}, 3, v0"); a(f"v_lshl_add_u32 v{RA+2}, v{t[2]}, 3, v{t[1]}")
        a(f"v_xor_b32 v{RA+3}, 32, v{RA+2}")
        assert CS == ACC + 64
        for i in range(0, 72, 2): a(f"v_pk_mov_b32 {vr(ACC+i,2)}, 0, 0")
        for i in range(4): a(f"v_mov_b32 v{ONES+i}, 0x3f803f80")
        a(f"s_mov_b32 s{sIT}, 0"); a(f"s_mov_b32 s{sSR}, 0")
        a(f"s_cmp_ge_u32 s{sCB}, 10"); a("s_cbranch_scc1 L_topv")

        def loop(kind):
            a.vmq = []; a.lgq = []
            a(f"L_top{kind}:")
            a("s_waitcnt vmcnt(22)")
            a(f"L_top2{kind}:")
            a("s_barrier")
            if self.ts:
                a("s_memtime s[100:101]"); a("s_waitcnt lgkmcnt(0)"); a(f"s_add_u32 s101, s{sIT}, 40"); a("s_mov_b32 m0, s101")
                a("v_writelane_b32 v255, s100, m0")
            for i in range(4): a(f"v_add_u32 v{CA+i}, s{sSR}, v{RA+i}")
            def rdB(ks, ct):
                for hf in range(2):
                    a(f"ds_read_b64_tr_b16 {vr(BF+ks*8+ct*4+hf*2,2)}, v{CA+2+ct} offset:{16384+ks*8192+hf*1024}")
            def rdA(ks, rt):
                a(f"ds_read_b128 {vr(AF+ks*32+rt*4,4)}, v{CA+ks} offset:{rt*2048}")
            def mm(D, W, X):
                if kind == 'q': a(f"v_mfma_f32_16x16x32_bf16 {vr(D,4)}, {vr(W,4)}, {vr(X,4)}, {vr(D,4)}")
                else: a(f"v_mfma_f32_16x16x32_bf16 {vr(D,4)}, {vr(X,4)}, {vr(W,4)}, {vr(D,4)}")
            rdB(0, 0); rdB(0, 1)
            for rt in range(8): rdA(0, rt)
            a(f"s_bitcmp1_b32 0x3a8, s{sIT}"); a(f"s_cbranch_scc1 L_alt")
            self.p1_dma()
            a(f"L_back{kind}:")
            nxt = [lambda: rdB(1, 0), lambda: rdB(1, 1)] + [(lambda rt=rt: rdA(1, rt)) for rt in range(8)]
            mm(CS, BF, ONES); mm(CS + 4, BF + 4, ONES)
            for rt in range(8):
                mm(ACC + rt * 8, BF, AF + rt * 4); mm(ACC + rt * 8 + 4, BF + 4, AF + rt * 4)
                nxt.pop(0)()
                if rt >= 6: nxt.pop(0)()
            mm(CS, BF + 8, ONES); mm(CS + 4, BF + 12, ONES)
            for rt in range(8):
                mm(ACC + rt * 8, BF + 8, AF + 32 + rt * 4); mm(ACC + rt * 8 + 4, BF + 12, AF + 32 + rt * 4)
                if rt == 3:
                    a(f"s_add_u32 s{sSR}, s{sSR}, 32768"); a(f"s_and_b32 s{sSR}, s{sSR}, 0x1ffff")
                    a(f"s_add_u32 s{sIT}, s{sIT}, 1")
            assert not a.lgq
            a(f"s_bitcmp1_b32 0x77, s{sIT}"); a(f"s_cbranch_scc1 L_top{kind}")
            a(f"s_cmp_eq_u32 s{sIT}, 10"); a(f"s_cbranch_scc1 L_epi{kind}")
            a("s_waitcnt vmcnt(16)")
            a(f"s_cmp_eq_u32 s{sIT}, 8"); a(f"s_cbranch_scc0 L_top2{kind}")
            a("s_waitcnt vmcnt(9)")
            a(f"s_branch L_top2{kind}")
        loop('q')
        loop('v')
        a.auto = False
        a("L_alt:")
        a(f"s_cmp_eq_u32 s{sIT}, 3"); a("s_cbranch_scc1 L_alt3")
        a(f"s_cmp_eq_u32 s{sIT}, 5"); a("s_cbranch_scc1 L_alt5")
        a(f"s_cmp_eq_u32 s{sIT}, 7"); a("s_cbranch_scc1 L_alt7")
        a(f"s_cmp_eq_u32 s{sIT}, 8"); a("s_cbranch_scc1 L_alt8")
        self.poll_issue(self.vPFA)
        a("s_branch L_altret")
        a("L_alt5:")
        self.poll_issue(SFA)
        self.p1_dma()
        a("s_branch L_altret")
        a("L_alt7:")
        a.vmq = []
        self.flag(2, tag='none')
        a("s_branch L_altret")
        a("L_alt8:")
        a.vmq = []
        self.poll_check(SFA, 1)
        a(f"s_cmp_ge_u32 s{sCB}, 10"); a("s_cbranch_scc1 L_alt8v")
        a(f"v_lshlrev_b32 v{t[1]}, 2, v{self.vL15}")
        for rt in range(8):
            a(f"buffer_load_dword v{ST+2*rt}, v{t[1]}, {srd(SWS)}, s{sNM} offen offset:{rt*64} sc1")
            a(f"buffer_load_dword v{ST+2*rt+1}, v{t[1]}, {srd(SWS)}, s{sRS} offen offset:{rt*64} sc1")
        a("s_branch L_backq")
        a("L_alt8v:")
        a(f"v_lshlrev_b32 v{t[1]}, 4, v{self.vG4}")
        for rt in range(8):
            a(f"buffer_load_dwordx4 {vr(ST+8*rt,4)}, v{t[1]}, {srd(SWS)}, s{sNM} offen offset:{rt*64} sc1")
            a(f"buffer_load_dwordx4 {vr(ST+8*rt+4,4)}, v{t[1]}, {srd(SWS)}, s{sRS} offen offset:{rt*64} sc1")
        a("s_branch L_backv")
        a("L_alt3:")
        self.p1_dma()
        a("s_waitcnt lgkmcnt(0)")
        a("L_prepproc:")
        a.auto = True; a.vmq = []; a.lgq = []
        self.prep(ST, ST + 40)
        a(f"s_cmp_eq_u32 s{sCB}, 15"); a("s_cbranch_scc1 L_spare2")
        a("L_altret:")
        a(f"s_cmp_ge_u32 s{sCB}, 10"); a("s_cbranch_scc1 L_backv")
        a("s_branch L_backq")

        a("L_spare:")
        a.vmq = []; a.lgq = []
        X = ACC
        assert RA + 4 - ACC >= 160 and ONES == CS + 8 and AF == ONES + 4 and BF == AF + 64 and RA == BF + 16
        S_ = ST; Q_ = ST + 8; one = ST + 16
        a(f"s_lshl_b32 s{sT[0]}, s{sW}, 5"); a(f"v_add_u32 v{t[1]}, s{sT[0]}, v{self.vG4}")
        a(f"v_mul_u32_u24 v{t[1]}, 1280, v{t[1]}"); a(f"v_lshl_add_u32 v{t[1]}, v{self.vL15}, 4, v{t[1]}")
        a(f"s_mul_i32 s{sF[2]}, s{sRB}, {128*1280}")
        for gm in range(8):
            for i in range(5):
                a(f"buffer_load_dwordx4 {vr(X+(gm*5+i)*4,4)}, v{t[1]}, {srd(SX)}, s{sF[2]} offen offset:{i*256}")
            a(f"s_add_u32 s{sF[2]}, s{sF[2]}, {4*1280}")
        a(f"v_mov_b32 v{one}, 0x3f803f80")
        for i in range(8): a(f"v_mov_b32 v{S_+i}, 0"); a(f"v_mov_b32 v{Q_+i}, 0")
        for gm in range(8):
            for i in range(20):
                a(f"v_dot2c_f32_bf16 v{S_+gm}, v{X+gm*20+i}, v{one}")
                a(f"v_dot2c_f32_bf16 v{Q_+gm}, v{X+gm*20+i}, v{X+gm*20+i}")
        for sh in (8, 4, 2, 1):
            for r in list(range(S_, S_ + 8)) + list(range(Q_, Q_ + 8)):
                a(f"v_add_f32_dpp v{r}, v{r}, v{r} row_ror:{sh} row_mask:0xf bank_mask:0xf")
        for gm in range(1, 8):
            a(f"v_cmp_eq_u32 vcc, {gm}, v{self.vL15}")
            a(f"v_cndmask_b32 v{S_}, v{S_}, v{S_+gm}, vcc"); a(f"v_cndmask_b32 v{Q_}, v{Q_}, v{Q_+gm}, vcc")
        a(f"v_mul_f32 v{S_}, {f32(-1/640):#x}, v{S_}")
        a(f"v_mul_f32 v{Q_}, {f32(1/640):#x}, v{Q_}")
        a(f"v_fma_f32 v{Q_}, -v{S_}, v{S_}, v{Q_}")
        a(f"v_add_f32 v{Q_}, {f32(1e-5):#x}, v{Q_}")
        a(f"v_rsq_f32 v{Q_}, v{Q_}")
        a(f"v_lshl_add_u32 v{t[1]}, v{self.vL15}, 2, v{self.vG4}"); a(f"v_lshlrev_b32 v{t[1]}, 2, v{t[1]}")
        a(f"s_lshl_b32 s{sT[0]}, s{sW}, 7"); a(f"v_add_u32 v{t[1]}, s{sT[0]}, v{t[1]}")
        a("s_mov_b32 exec_lo, 0x00ff00ff"); a("s_mov_b32 exec_hi, 0x00ff00ff")
        a(f"buffer_store_dword v{S_}, v{t[1]}, {srd(SWS)}, s{sNM} offen sc1")
        a(f"buffer_store_dword v{Q_}, v{t[1]}, {srd(SWS)}, s{sRS} offen sc1")
        a("s_mov_b64 exec, -1")
        self.flag(1)
        if self.ts:
            a("s_memtime s[100:101]"); a("s_waitcnt lgkmcnt(0)"); a("v_writelane_b32 v255, s100, 51")
        a("s_barrier")
        a("s_branch L_prepproc")
        a("L_spare2:")
        self.flag(2)
        self.poll_issue(self.vPFA)
        a("s_branch L_p1done")

        a("L_epiq:")
        a.vmq = []; a.lgq = []
        self.stamp('p1loop'); n0 = self.nts
        a(f"s_cmp_lt_u32 s{sCB}, 5"); a(f"s_cselect_b32 s{sF[4]}, {f32(LOG2E/math.sqrt(20)):#x}, 1.0")
        a(f"v_and_b32 v{t[1]}, 1, v{self.vG4}"); a(f"v_lshlrev_b32 v{t[1]}, 10, v{t[1]}")
        a(f"v_lshrrev_b32 v{t[2]}, 1, v{self.vG4}"); a(f"v_lshl_add_u32 v{t[1]}, v{t[2]}, 9, v{t[1]}")
        a(f"v_lshl_add_u32 v{t[1]}, v{self.vL15}, 4, v{t[1]}")
        a(f"s_mul_i32 s{sF[5]}, s{sRB}, {4*QKV_RB}"); a(f"s_lshl_b32 s{sT[0]}, s{sCB}, 13"); a(f"s_add_u32 s{sF[5]}, s{sF[5]}, s{sT[0]}")
        a(f"s_lshl_b32 s{sT[0]}, s{sW}, 11"); a(f"s_add_u32 s{sF[5]}, s{sF[5]}, s{sT[0]}"); a(f"s_add_u32 s{sF[5]}, s{sF[5]}, {WS_QKV}")
        a("s_waitcnt vmcnt(1)")
        PK = AF
        for rt in range(8):
            s = ST + 2 * rt
            a(f"v_mul_f32 v{s+1}, s{sF[4]}, v{s+1}")
            for h in range(4):
                d = ACC + rt * 8 + 2 * h
                a(f"v_pk_fma_f32 {vr(d,2)}, {vr(CS+2*h,2)}, {vr(s,2)}, {vr(d,2)} op_sel_hi:[1,0,1]")
            for h in range(4):
                d = ACC + rt * 8 + 2 * h
                a(f"v_pk_mul_f32 {vr(d,2)}, {vr(d,2)}, {vr(s,2)} op_sel:[0,1]")
            p = PK + 4 * rt
            for h in range(4):
                d = ACC + rt * 8 + 2 * h
                a(f"v_cvt_pk_bf16_f32 v{p+h}, v{d}, v{d+1}")
            if rt:
                q = p - 4
                a(f"v_permlane16_swap_b32 v{q}, v{q+2}"); a(f"v_permlane16_swap_b32 v{q+1}, v{q+3}")
                a(f"buffer_store_dwordx4 {vr(q,4)}, v{t[1]}, {srd(SWS)}, s{sF[5]} offen offset:{((rt-1)&1)*256} sc1")
                if (rt - 1) & 1: a(f"s_add_u32 s{sF[5]}, s{sF[5]}, {QKV_RB}")
        q = PK + 28
        a(f"v_permlane16_swap_b32 v{q}, v{q+2}"); a(f"v_permlane16_swap_b32 v{q+1}, v{q+3}")
        a(f"buffer_store_dwordx4 {vr(q,4)}, v{t[1]}, {srd(SWS)}, s{sF[5]} offen offset:256 sc1")
        a("s_branch L_p1done")

        a("L_epiv:")
        a.vmq = []; a.lgq = []
        if self.ts: self.nts = n0 - 1; self.stamp('p1loop'); self.tsnames.pop()
        assert all((n * 1639) >> 16 == n // 40 for n in range(640))
        a(f"s_sub_u32 s{sT[0]}, s{sCB}, 10"); a(f"s_lshl_b32 s{sT[0]}, s{sT[0]}, 7"); a(f"s_lshl_b32 s{sF[4]}, s{sW}, 5")
        a(f"s_add_u32 s{sT[0]}, s{sT[0]}, s{sF[4]}")
        a(f"s_movk_i32 s{sF[4]}, 1920")
        for ct in range(2):
            a(f"v_add_u32 v{t[3]}, s{sT[0]}, v{self.vL15}")
            if ct: a(f"v_add_u32 v{t[3]}, 16, v{t[3]}")
            a(f"v_mul_u32_u24 v{t[4]}, 1639, v{t[3]}"); a(f"v_lshrrev_b32 v{t[4]}, 16, v{t[4]}")
            a(f"v_lshlrev_b32 v{t[3]}, 4, v{t[3]}"); a(f"v_mad_u32_u24 v{t[3]}, v{t[4]}, s{sF[4]}, v{t[3]}")
            a(f"v_mul_u32_u24 v{t[4]}, 640, v{self.vG4}"); a(f"v_add_u32 v{CA+ct}, v{t[3]}, v{t[4]}")
        a(f"s_mul_i32 s{sF[5]}, s{sRB}, {4*QKV_RB}"); a(f"s_add_u32 s{sF[5]}, s{sF[5]}, {WS_QKV + 160*512}")
        a("s_waitcnt vmcnt(1)")
        for kb in range(4):
            for ct in range(2):
                p = AF + 4 * (kb * 2 + ct)
                dd = [(ACC + (2 * kb + o) * 8 + ct * 4 + 2 * h, ST + 8 * (2 * kb + o) + 2 * h) for o in range(2) for h in range(2)]
                for d, s in dd: a(f"v_pk_fma_f32 {vr(d,2)}, {vr(CS+4*ct,2)}, {vr(s,2)}, {vr(d,2)}")
                for d, s in dd: a(f"v_pk_mul_f32 {vr(d,2)}, {vr(d,2)}, {vr(s+4,2)}")
                for i, (d, s) in enumerate(dd): a(f"v_cvt_pk_bf16_f32 v{p+i}, v{d}, v{d+1}")
                a(f"buffer_store_dwordx4 {vr(p,4)}, v{CA+ct}, {srd(SWS)}, s{sF[5]} offen sc1")
            a(f"s_add_u32 s{sF[5]}, s{sF[5]}, {QKV_RB}")
        a("L_p1done:")
        a.vmq = []; a.lgq = []
        V.rel("acc", "cs", "ones", "AF", "BF", "RA", "CA", "DA", "DB", "ST", "SFA")
        self.stamp('p1epi')
        a("s_barrier")

    def prep(self, R, A3):
        a = self.a; t = self.t
        rho, c = t[1], t[2]
        a(f"v_bfe_u32 v{rho}, v0, 2, 2"); a(f"v_and_b32 v{c}, 3, v0")
        a(f"s_cmp_lt_u32 s{sJ}, 10"); a("s_cbranch_scc0 L_pr1")
        a(f"v_lshl_add_u32 v{t[3]}, v{self.vG4}, 3, v{rho}"); a(f"v_mul_u32_u24 v{t[3]}, 192, v{t[3]}")
        a(f"v_and_b32 v{t[4]}, 1, v{c}"); a(f"v_mul_u32_u24 v{t[4]}, 12288, v{t[4]}"); a(f"v_add_u32 v{t[3]}, v{t[3]}, v{t[4]}")
        a(f"v_lshrrev_b32 v{t[4]}, 1, v{c}"); a(f"v_lshl_add_u32 v{t[3]}, v{t[4]}, 3, v{t[3]}")
        a(f"s_mul_i32 s{sT[0]}, s{sW}, 48"); a(f"s_add_u32 s{sT[0]}, s{sT[0]}, {L_PREP}"); a(f"v_add_u32 v{A3}, s{sT[0]}, v{t[3]}")
        for kl in range(2):
            for tt in range(3):
                for hf in range(2):
                    a(f"ds_read_b64_tr_b16 {vr(R+(kl*3+tt)*4+2*hf,2)}, v{A3} offset:{kl*6144+hf*768+tt*16}")
        a(f"v_and_b32 v{t[3]}, 0x39, v0")
        a(f"v_bfe_u32 v{t[4]}, v0, 1, 1"); a(f"v_lshl_or_b32 v{t[3]}, v{t[4]}, 2, v{t[3]}")
        a(f"v_bfe_u32 v{t[4]}, v0, 2, 1"); a(f"v_lshl_or_b32 v{t[3]}, v{t[4]}, 1, v{t[3]}")
        a(f"v_lshlrev_b32 v{t[3]}, 4, v{t[3]}")
        a(f"s_and_b32 s{sT[0]}, s2, 15"); a(f"s_lshl_b32 s{sT[0]}, s{sT[0]}, 2"); a(f"s_add_u32 s{sT[0]}, s{sT[0]}, s{sW}")
        a(f"s_mul_i32 s{sT[0]}, s{sT[0]}, 20"); a(f"s_lshl_b32 s{sT[1]}, s{sJ}, 1"); a(f"s_add_u32 s{sT[0]}, s{sT[0]}, s{sT[1]}")
        a(f"s_mul_i32 s{sT[0]}, s{sT[0]}, 3072"); a(f"s_add_u32 s{sT[0]}, s{sT[0]}, {WS_W4F}")
        a(f"s_add_u32 s{sT[1]}, s{sT[0]}, 3072")
        for kl in range(2):
            for tt in range(3):
                a(f"buffer_store_dwordx4 {vr(R+(kl*3+tt)*4,4)}, v{t[3]}, {srd(SWS)}, s{sT[kl]} offen offset:{tt*1024} sc1")
        a("s_branch L_prdone")
        a("L_pr1:")
        a.vmq = []; a.lgq = []
        a(f"s_cmp_lt_u32 s{sJ}, 14"); a("s_cbranch_scc0 L_pr2")
        a(f"v_lshl_add_u32 v{t[3]}, v{self.vG4}, 3, v{rho}"); a(f"v_mul_u32_u24 v{t[3]}, 320, v{t[3]}")
        a(f"v_lshl_add_u32 v{t[3]}, v{c}, 3, v{t[3]}")
        a(f"s_sub_u32 s{sT[0]}, s2, 160"); a(f"s_lshr_b32 s{sT[1]}, s{sT[0]}, 2"); a(f"s_mul_i32 s{sT[1]}, s{sT[1]}, 3")
        a(f"s_and_b32 s{sT[0]}, s{sT[0]}, 3"); a(f"s_mul_i32 s{sT[0]}, s{sT[0]}, 96"); a(f"s_add_u32 s{sT[0]}, s{sT[0]}, s{sT[1]}")
        a(f"s_mul_i32 s{sT[0]}, s{sT[0]}, 5120"); a(f"s_add_u32 s{sT[0]}, s{sT[0]}, {WS_W5F}")
        for x in range(3):
            a(f"s_add_u32 s{sT[1]}, s{sW}, {4*x}"); a(f"s_min_u32 s{sT[1]}, s{sT[1]}, 9")
            a(f"s_lshl_b32 s{sT[2]}, s{sT[1]}, 5"); a(f"s_add_u32 s{sT[2]}, s{sT[2]}, {L_PREP}")
            a(f"v_add_u32 v{A3+x}, s{sT[2]}, v{t[3]}")
            a(f"s_cmp_ge_u32 s{sT[1]}, 5"); a(f"s_cselect_b32 s{sT[2]}, {48*5120 - 5*1024}, 0")
            a(f"s_lshl_b32 s{sT[1]}, s{sT[1]}, 10"); a(f"s_add_u32 s{sT[1]}, s{sT[1]}, s{sT[2]}")
            a(f"s_add_u32 s{sT[3+x]}, s{sT[1]}, s{sT[0]}")
            for kl in range(3):
                for hf in range(2):
                    a(f"ds_read_b64_tr_b16 {vr(R+(x*3+kl)*4+2*hf,2)}, v{A3+x} offset:{kl*10240+hf*1280}")
            if x: self._w2st(R, x - 1)
        self._w2st(R, 2)
        a("s_branch L_prdone")
        a("L_pr2:")
        a.vmq = []; a.lgq = []
        a(f"s_sub_u32 s{sT[0]}, s2, 224")
        a(f"s_and_b32 s{sT[1]}, s{sT[0]}, 7"); a(f"s_lshl_b32 s{sT[1]}, s{sT[1]}, 2"); a(f"s_lshr_b32 s{sT[0]}, s{sT[0]}, 3")
        a(f"s_add_u32 s{sT[0]}, s{sT[0]}, s{sT[1]}"); a(f"s_mul_i32 s{sT[0]}, s{sT[0]}, 25600"); a(f"s_add_u32 s{sT[0]}, s{sT[0]}, {WS_W3F}")
        tab0 = 0 | (4 << 6) | (20 << 12) | (24 << 18) | (16 << 24)
        tab1 = 8 | (12 << 6) | (28 << 12) | (32 << 18) | (36 << 24)
        a(f"s_mov_b32 s{sT[5]}, {tab0}"); a(f"s_mov_b32 s{sT[6]}, {tab1}")
        for i in range(7):
            q, kp, tt = 72 + i, sT[2], sT[3]
            a(f"s_add_u32 s{q}, s{sW}, {4*i}"); a(f"s_min_u32 s{q}, s{q}, 24")
            a(f"s_mul_i32 s{kp}, s{q}, 52"); a(f"s_lshr_b32 s{kp}, s{kp}, 8")
            a(f"s_mul_i32 s{tt}, s{kp}, 5"); a(f"s_sub_u32 s{tt}, s{q}, s{tt}")
            a(f"s_lshl_b32 s{kp}, s{kp}, 2"); a(f"s_lshl_b32 s{tt}, s{tt}, 5"); a(f"s_add_u32 s{tt}, s{tt}, {L_PREP}")
            a(f"v_add_u32 v{t[3]}, s{kp}, v{self.vG4}")
            a(f"v_mul_u32_u24 v{t[4]}, 52, v{t[3]}"); a(f"v_lshrrev_b32 v{t[4]}, 8, v{t[4]}")
            a(f"v_mul_u32_u24 v{t[5]}, 5, v{t[4]}"); a(f"v_sub_u32 v{t[3]}, v{t[3]}, v{t[5]}")
            a(f"v_mul_u32_u24 v{t[3]}, 6, v{t[3]}")
            a(f"v_mul_u32_u24 v{t[4]}, 40, v{t[4]}"); a(f"v_add_u32 v{t[4]}, v{t[4]}, v{rho}")
            for hf in range(2):
                a(f"v_bfe_u32 v{t[5]}, s{sT[5+hf]}, v{t[3]}, 6"); a(f"v_add_u32 v{t[5]}, v{t[5]}, v{t[4]}")
                a(f"v_mul_u32_u24 v{t[5]}, 160, v{t[5]}"); a(f"v_lshl_add_u32 v{t[5]}, v{c}, 3, v{t[5]}")
                a(f"v_add_u32 v{A3+hf}, s{tt}, v{t[5]}")
                a(f"ds_read_b64_tr_b16 {vr(R+i*4+2*hf,2)}, v{A3+hf}")
            a(f"s_lshl_b32 s{q}, s{q}, 10"); a(f"s_add_u32 s{q}, s{q}, s{sT[0]}")
        for i in range(7):
            a(f"buffer_store_dwordx4 {vr(R+i*4,4)}, v{self.vL16}, {srd(SWS)}, s{72+i} offen sc1")
        assert all((C * 52) >> 8 == C // 5 for C in range(25))
        a("L_prdone:")
        a.vmq = []; a.lgq = []

    def _w2st(self, R, x):
        a = self.a
        for kl in range(3):
            if kl: a(f"s_add_u32 s{sT[3+x]}, s{sT[3+x]}, 5120")
            a(f"buffer_store_dwordx4 {vr(R+(x*3+kl)*4,4)}, v{self.vL16}, {srd(SWS)}, s{sT[3+x]} offen sc1")

    def p2(self):
        a = self.a; V = self.V; t = self.t; E = self.E; o = self.o
        sP, sWR, sQB = sF[0], sF[1], sF[2]
        a(f"s_and_b32 s{sP}, s{sW}, 1"); a(f"s_lshr_b32 s{sWR}, s{sW}, 1")
        q, h = V.alloc("q31"), V.alloc("h5")
        a(f"v_and_b32 v{q}, 31, v0"); a(f"v_lshrrev_b32 v{h}, 5, v0")
        M = V.alloc("M", 8)
        a(f"v_lshlrev_b32 v{t[1]}, 2, v{h}"); a(f"v_sub_u32 v{t[1]}, v{q}, v{t[1]}")
        for r in range(16):
            b = 16 * ((r >> 2) & 1) + 8 * (r >> 3) + (r & 3)
            a(f"v_cmp_le_i32 s[{SM+2*r}:{SM+2*r+1}], {b}, v{t[1]}")
        a(f"v_mov_b32 v{t[2]}, 0xffff"); a(f"v_mov_b32 v{t[3]}, 0xffff0000")
        for d in range(8):
            a(f"v_cndmask_b32 v{M+d}, 0, v{t[2]}, s[{SM+4*d}:{SM+4*d+1}]")
            a(f"v_cndmask_b32 v{t[4]}, 0, v{t[3]}, s[{SM+4*d+2}:{SM+4*d+3}]")
            a(f"v_or_b32 v{M+d}, v{M+d}, v{t[4]}")
        KM, KT, V0, V1, QT = V.alloc("KM"), V.alloc("KT"), V.alloc("V0"), V.alloc("V1"), V.alloc("QT")
        a(f"v_and_b32 v{t[1]}, 7, v0"); a(f"v_bfe_u32 v{t[2]}, v0, 3, 1"); a(f"v_lshl_or_b32 v{t[1]}, v{t[2]}, 4, v{t[1]}")
        a(f"v_bfe_u32 v{t[2]}, v0, 4, 1"); a(f"v_lshl_or_b32 v{t[1]}, v{t[2]}, 3, v{t[1]}")
        a(f"v_lshlrev_b32 v{t[1]}, 4, v{t[1]}")
        a(f"s_mul_i32 s{sT[0]}, s{sWR}, {2*KVT}")
        a(f"s_mul_i32 s{sT[1]}, s{sP}, 1536"); a(f"s_add_u32 s{sT[1]}, s{sT[1]}, s{sT[0]}")
        a(f"v_lshl_add_u32 v{KM}, v{h}, 9, v{t[1]}"); a(f"v_add_u32 v{KM}, s{sT[1]}, v{KM}")
        a(f"s_lshl_b32 s{sT[1]}, s{sP}, 3"); a(f"s_add_u32 s{sT[2]}, s{sT[1]}, s{sT[0]}"); a(f"s_add_u32 s{sT[2]}, s{sT[2]}, 1024")
        a(f"v_add_u32 v{KT}, s{sT[2]}, v{t[1]}")
        a(f"v_lshl_add_u32 v{QT}, v{q}, 4, s{sT[1]}")
        a(f"s_mul_i32 s{sT[1]}, s{sP}, 320"); a(f"s_add_u32 s{sT[0]}, s{sT[0]}, {L_V}"); a(f"s_add_u32 s{sT[1]}, s{sT[1]}, s{sT[0]}")
        a(f"v_mul_u32_u24 v{t[1]}, 640, v{h}"); a(f"v_lshl_add_u32 v{t[1]}, v{q}, 4, v{t[1]}"); a(f"v_add_u32 v{V0}, s{sT[1]}, v{t[1]}")
        a(f"v_add_u32 v{V1}, 1280, v{V0}")
        a(f"s_add_u32 s{sT[0]}, s{sT[0]}, 2560"); a(f"v_mov_b32 v{t[1]}, s{sT[0]}")
        a(f"v_cmp_gt_u32 vcc, 20, v{q}")
        a(f"v_cndmask_b32 v{V0}, v{t[1]}, v{V0}, vcc"); a(f"v_cndmask_b32 v{V1}, v{t[1]}, v{V1}, vcc")
        ON = V.alloc("ON", 4)
        a(f"v_min_u32 v{t[1]}, 11, v0"); a(f"s_lshl_b32 s{sT[0]}, s{sG}, 2"); a(f"v_add_u32 v{t[2]}, s{sT[0]}, v{t[1]}")
        a(f"v_cmp_le_u32 vcc, 8, v{t[2]}"); a(f"v_mov_b32 v{t[3]}, 0x3f803f80")
        a(f"v_mul_u32_u24 v{t[1]}, {KVT}, v{t[1]}")
        for i in range(4): a(f"v_cndmask_b32 v{ON+i}, 0, v{t[3]}, vcc")
        a(f"ds_write_b128 v{t[1]}, {vr(ON,4)} offset:{L_V+2560}")
        V.rel("ON")
        FA = V.alloc("FA")
        a(f"v_min_u32 v{t[1]}, 13, v0"); a(f"v_lshrrev_b32 v{t[2]}, 1, v{t[1]}"); a(f"v_add_u32 v{t[2]}, 2, v{t[2]}")
        a(f"v_mul_u32_u24 v{t[3]}, 11, v{t[2]}"); a(f"v_lshrrev_b32 v{t[3]}, 5, v{t[3]}")
        a(f"v_mul_u32_u24 v{t[4]}, 3, v{t[3]}"); a(f"v_sub_u32 v{t[2]}, v{t[2]}, v{t[4]}")
        a(f"s_sub_u32 s{sT[0]}, s{sG}, 2"); a(f"v_add_u32 v{t[2]}, s{sT[0]}, v{t[2]}"); a(f"v_max_i32 v{t[2]}, 0, v{t[2]}")
        a(f"s_mul_i32 s{sT[0]}, s{sJ}, 40"); a(f"s_lshr_b32 s{sT[0]}, s{sT[0]}, 5")
        a(f"v_and_b32 v{t[1]}, 1, v{t[1]}"); a(f"v_add_u32 v{t[1]}, s{sT[0]}, v{t[1]}")
        a(f"v_mul_u32_u24 v{t[3]}, 5, v{t[3]}"); a(f"v_lshrrev_b32 v{t[4]}, 2, v{t[1]}"); a(f"v_add_u32 v{t[3]}, v{t[3]}, v{t[4]}")
        self.wg_of_p1(FA, t[2], t[3], t[4])
        a(f"v_lshlrev_b32 v{FA}, 7, v{FA}"); a(f"v_and_b32 v{t[1]}, 3, v{t[1]}"); a(f"v_lshl_add_u32 v{FA}, v{t[1]}, 3, v{FA}")
        self.flag(3)
        self.stamp('qkvflag')
        self.poll_check(self.vPFA, 2)
        self.stamp('prepseen')
        V.rel("PFA")
        self.weights_prefetch_setup()
        self.drain_fill(o.get('burst1', 10))
        self.poll_issue(FA)
        QM = V.alloc("QM", 8); QL = V.alloc("QL", 4)
        for i in range(4): a(f"v_mov_b32 v{QL+i}, 0")
        KV = V.alloc("KV", 3)
        sKo = [sF[3], sF[4], sF[5]]; sVo = [sF[6], sF[7], sF[8]]; sM0 = sF[9]
        sQ = [sT[5], sT[6], sT[7], sT[8]]
        a(f"v_lshlrev_b32 v{t[1]}, 9, v{h}")
        a(f"s_mul_i32 s{sT[2]}, s{sJ}, 2560"); a(f"s_add_u32 s{sT[2]}, s{sT[2]}, {WS_QKV}")
        a(f"s_mul_i32 s{sM0}, s{sW}, {3*KVT}")
        a(f"s_lshl_b32 s{sT[0]}, s{sG}, 2"); a(f"s_mul_i32 s{sT[1]}, s{sW}, 3"); a(f"s_add_u32 s{sT[0]}, s{sT[0]}, s{sT[1]}"); a(f"s_sub_u32 s{sT[0]}, s{sT[0]}, 8")
        for x in range(3):
            a(f"s_add_u32 s{sT[1]}, s{sT[0]}, {x}")
            a(f"s_max_i32 s{sT[3]}, s{sT[1]}, 0"); a(f"s_mul_i32 s{sT[3]}, s{sT[3]}, {QKV_RB}"); a(f"s_add_u32 s{sT[3]}, s{sT[3]}, s{sT[2]}")
            a(f"s_add_u32 s{sKo[x]}, s{sT[3]}, {80*512}"); a(f"s_add_u32 s{sVo[x]}, s{sT[3]}, {160*512}")
            a(f"s_cmp_lt_i32 s{sT[1]}, 0")
            a(f"s_cselect_b32 s{sVo[x]}, {WS_SIZE}, s{sVo[x]}")
            a(f"s_cselect_b64 vcc, -1, 0")
            a(f"v_cndmask_b32 v{KV+x}, v{self.vL16}, v{t[1]}, vcc")
        a(f"s_lshl_b32 s{sQB}, s{sG}, 2"); a(f"s_lshl_b32 s{sT[0]}, s{sWR}, 1"); a(f"s_add_u32 s{sQB}, s{sQB}, s{sT[0]}")
        a(f"s_mul_i32 s{sQ[0]}, s{sQB}, {QKV_RB}"); a(f"s_add_u32 s{sQ[0]}, s{sQ[0]}, s{sT[2]}")
        a(f"s_mul_i32 s{sQ[1]}, s{sP}, 1536"); a(f"s_add_u32 s{sQ[1]}, s{sQ[1]}, s{sQ[0]}")
        a(f"s_add_u32 s{sQ[2]}, s{sQ[0]}, {QKV_RB}"); a(f"s_add_u32 s{sQ[3]}, s{sQ[1]}, {QKV_RB}")
        V.rel("q31", "h5")
        self.red_setup()
        self.poll_check(FA, 3)
        self.stamp('qkvseen')
        V.rel("FA")
        for x in range(3):
            a(f"s_add_u32 m0, s{sM0}, {L_K + x*KVT}")
            for i in range(2):
                a(f"buffer_load_dwordx4 v{KV+x}, {srd(SWS)}, s{sKo[x]} offen offset:{i*1024} sc1 lds", tag='K')
        a(f"buffer_load_dwordx4 {vr(QM,4)}, v{self.vL16}, {srd(SWS)}, s{sQ[1]} offen sc1")
        a("s_mov_b32 exec_hi, 0")
        for x in range(3):
            a(f"s_add_u32 m0, s{sM0}, {L_K + x*KVT}")
            a(f"buffer_load_dwordx4 v{KV+x}, {srd(SWS)}, s{sKo[x]} offen offset:2048 sc1 lds", tag='K')
        a(f"buffer_load_dwordx2 {vr(QL,2)}, v{QT}, {srd(SWS)}, s{sQ[0]} offen offset:1024 sc1", tag='K')
        a(f"buffer_load_dwordx2 {vr(QL+2,2)}, v{QT}, {srd(SWS)}, s{sQ[2]} offen offset:1024 sc1")
        for x in range(3):
            a(f"s_add_u32 m0, s{sM0}, {L_V + x*KVT}")
            a(f"buffer_load_dwordx4 v{self.vL16}, {srd(SWS)}, s{sVo[x]} offen offset:2048 sc1 lds", tag='V')
        a("s_mov_b64 exec, -1")
        for x in range(3):
            a(f"s_add_u32 m0, s{sM0}, {L_V + x*KVT}")
            for i in range(2):
                a(f"buffer_load_dwordx4 v{self.vL16}, {srd(SWS)}, s{sVo[x]} offen offset:{i*1024} sc1 lds", tag='V')
        a(f"buffer_load_dwordx4 {vr(QM+4,4)}, v{self.vL16}, {srd(SWS)}, s{sQ[3]} offen sc1")
        V.rel("KV")
        sO = [sF[3], sF[4]]
        a(f"s_mul_i32 s{sO[0]}, s{sQB}, {OH_RB}"); a(f"s_mul_i32 s{sT[1]}, s{sJ}, 2560"); a(f"s_add_u32 s{sO[0]}, s{sO[0]}, s{sT[1]}")
        a(f"s_add_u32 s{sO[0]}, s{sO[0]}, {WS_O}"); a(f"s_lshl_b32 s{sT[1]}, s{sP}, 10"); a(f"s_add_u32 s{sO[1]}, s{sT[1]}, s{sO[0]}")
        a.wait_vm_tag('K'); a.wait_lg()
        a("s_barrier")
        self.stamp('kin')

        S = [V.alloc("S0", 16), V.alloc("S1", 16)]; NM = V.alloc("NM", 16); O = V.alloc("O", 16)
        P = [V.alloc("P0", 8), V.alloc("P1", 8)]; P2 = V.alloc("P2", 8)
        KF = [V.alloc("KF0", 4), V.alloc("KF1", 4)]; KL = [V.alloc("KL0", 2), V.alloc("KL1", 2)]
        VF = [240, 248]
        mx = t[1]
        for hf in range(2):
            def rdK(i, b):
                return [f"ds_read_b128 {vr(KF[b],4)}, v{KM} offset:{(i+hf)*KVT}", f"ds_read_b64 {vr(KL[b],2)}, v{KT} offset:{(i+hf)*KVT}"]
            def rdV(i, b):
                return [f"ds_read_b128 {ar(VF[b],4)}, v{V0} offset:{(i+hf)*KVT}", f"ds_read_b128 {ar(VF[b]+4,4)}, v{V1} offset:{(i+hf)*KVT}"]
            def mS1(sb, b, C):
                return f"v_mfma_f32_32x32x16_bf16 {vr(S[sb],16)}, {vr(KF[b],4)}, {vr(QM+4*hf,4)}, {C}"
            def mS2(sb, b):
                return f"v_mfma_f32_32x32x8_bf16 {vr(S[sb],16)}, {vr(KL[b],2)}, {vr(QL+2*hf,2)}, {vr(S[sb],16)}"
            def mPV(Pr, b, k, first):
                return f"v_mfma_f32_32x32x16_bf16 {vr(O,16)}, {ar(VF[b]+4*k,4)}, {vr(Pr+4*k,4)}, {'0' if first else vr(O,16)}"
            if hf == 0:
                for x in rdK(0, 0) + rdK(8, 1): E(x)
            E(mS1(0, 0, '0')); E(mS2(0, 0))
            for x in rdK(1, 0): E(x)
            E(mS1(1, 1, '0')); E(mS2(1, 1))
            for x in rdK(2, 1): E(x)
            if hf == 1: self.p2_epi(0)
            comb = [f"v_cndmask_b32 v{NM+r}, v{S[0]+r}, v{S[1]+r}, s[{SM+2*r}:{SM+2*r+1}]" for r in range(16)]
            for x in comb: E(x)
            def maxs(R, first):
                o_ = []
                if first:
                    o_.append(f"v_max3_f32 v{mx}, v{R}, v{R+1}, v{R+2}")
                    o_.append(f"v_max_f32 v{mx}, v{mx}, v{R+3}")
                    rng = range(4, 16, 2)
                else: rng = range(0, 16, 2)
                for r in rng: o_.append(f"v_max3_f32 v{mx}, v{mx}, v{R+r}, v{R+r+1}")
                return o_
            self.interleave(maxs(NM, True), [[mS1(0, 0, '0')], [mS2(0, 0)] + rdK(3, 0)])
            for i in range(2, 8):
                b = (i + 1) & 1
                nk = rdK(i + 2, b) if i + 2 <= 7 else (rdK(0, b) if i == 7 else rdK(8, b))
                E(mS1(b, b, '0')); E(mS2(b, b))
                for x in nk: E(x)
                for x in maxs(S[b ^ 1], False): E(x)
            if hf == 0:
                a.wait_vm_tag('V'); a("s_barrier")
                self.stamp('vin')
                self.fill_start(o.get('fp2', 110))
            for x in rdV(0, 0) + rdV(8, 1): E(x)
            for x in maxs(S[0], False): E(x)
            E(f"v_mov_b32 v{t[2]}, v{mx}")
            E(f"v_permlane32_swap_b32 v{mx}, v{t[2]}")
            for r in range(16): E(f"v_min_f32 v{NM+r}, -v{mx}, -v{t[2]}")
            C = vr(NM, 16)
            E(mS1(0, 0, C)); E(mS2(0, 0))
            for x in rdK(1, 0): E(x)
            E(mS1(1, 1, C)); E(mS2(1, 1))
            for x in rdK(2, 1): E(x)
            for r in range(16): E(f"v_cndmask_b32 v{S[1]+r}, v{S[0]+r}, v{S[1]+r}, s[{SM+2*r}:{SM+2*r+1}]")
            def expcvt(R, Pd):
                o_ = []
                for d in range(8):
                    o_.append(f"v_exp_f32 v{R+2*d}, v{R+2*d}"); o_.append(f"v_exp_f32 v{R+2*d+1}, v{R+2*d+1}")
                    if d: o_.append(f"v_cvt_pk_bf16_f32 v{Pd+d-1}, v{R+2*d-2}, v{R+2*d-1}")
                o_.append(f"v_cvt_pk_bf16_f32 v{Pd+7}, v{R+14}, v{R+15}")
                return o_
            msk = [f"v_bfi_b32 v{P[0]+d}, v{M+d}, 0, v{P2+d}" for d in range(8)] + [f"v_and_b32 v{P2+d}, v{M+d}, v{P2+d}" for d in range(8)]
            self.interleave(expcvt(S[1], P2) + msk, [[mS1(0, 0, C)], [mS2(0, 0)] + rdK(3, 0)])
            for i in range(1, 8):
                sb = (i + 1) & 1
                mf = []
                if hf == 1 and i == o.get('p2stop', 4): self.fill_on = False
                if i + 1 <= 7:
                    nb = sb ^ 1
                    mf.append([mS1(nb, nb, C)])
                    nk = rdK(i + 3, nb) if i + 3 <= 7 else []
                    if hf == 0 and i == 5: nk = rdK(9, nb)
                    if hf == 0 and i == 6: nk = rdK(1, nb)
                    mf.append([mS2(nb, nb)] + nk)
                if i == 1:
                    mf.append([mPV(P[0], 0, 0, True)]); mf.append([mPV(P[0], 0, 1, False)] + rdV(1, 0))
                    mf.append([mPV(P2, 1, 0, False)]); mf.append([mPV(P2, 1, 1, False)] + rdV(2, 1))
                else:
                    vb = i & 1
                    mf.append([mPV(P[(i - 1) & 1], vb, 0, False)])
                    mf.append([mPV(P[(i - 1) & 1], vb, 1, False)] + (rdV(i + 1, vb) if i + 1 <= 7 else []))
                self.interleave(expcvt(S[sb], P[i & 1]), mf)
            E(mPV(P[1], 0, 0, False)); E(mPV(P[1], 0, 1, False))
            def epi(hf_, O=O, P2=P2, QT=QT):
                E(f"v_rcp_f32 v{t[2]}, v{O+12}")
                for r in range(12): E(f"v_mul_f32 v{O+r}, v{t[2]}, v{O+r}")
                for d in range(6): E(f"v_cvt_pk_bf16_f32 v{P2+d}, v{O+2*d}, v{O+2*d+1}")
                a(f"buffer_store_dwordx4 {vr(P2,4)}, v{self.vL16}, {srd(SWS)}, s{sO[1]} offen sc1")
                a("s_mov_b32 exec_hi, 0")
                a(f"buffer_store_dwordx2 {vr(P2+4,2)}, v{QT}, {srd(SWS)}, s{sO[0]} offen offset:2048 sc1", tag=f'O{hf_}')
                a("s_mov_b64 exec, -1")
                if hf_ == 0:
                    a(f"s_add_u32 s{sO[0]}, s{sO[0]}, {OH_RB}"); a(f"s_add_u32 s{sO[1]}, s{sO[1]}, {OH_RB}")
                    self.at(o.get('oflag', 1000), lambda: self.flag(4, tag='O0'))
                self.stamp(f'p2_{hf_}')
            self.p2_epi = epi
        self.flush_acts()
        V.rel("S0", "S1", "NM", "P0", "P1", "KF0", "KF1", "KL0", "KL1", "QM", "QL", "KM", "KT", "V0", "V1", "M")
        self.HK = [V.alloc("HKa", 4), V.alloc("HKb", 4)]; self.HK2 = V.alloc("HK2", 2)
        for hf in range(2):
            a(f"s_add_u32 s{sT[0]}, s{self.sXO}, {hf*32*1280}")
            a(f"buffer_load_dwordx4 {vr(self.HK[hf],4)}, v{self.vX}, {srd(SX)}, s{sT[0]} offen")
            a(f"buffer_load_dword v{self.HK2+hf}, v{self.vX2}, {srd(SX)}, s{sT[0]} offen")
        self.p2_epi(1)
        V.rel("O", "P2", "QT")

    def weights_prefetch_setup(self):
        a = self.a; V = self.V
        self.W3 = V.alloc("W3", 100)
        s3, s4, s5 = sF[12], sF[13], sF[14]
        self.s5 = s5
        a(f"s_lshl_b32 s{sT[0]}, s{self.sCB8}, 2"); a(f"s_add_u32 s{sT[0]}, s{sT[0]}, s{sW}")
        a(f"s_mul_i32 s{s3}, s{sT[0]}, 25600"); a(f"s_add_u32 s{s3}, s{s3}, {WS_W3F}")
        a(f"s_mul_i32 s{s5}, s{sT[0]}, 61440"); a(f"s_add_u32 s{s5}, s{s5}, {WS_W5F}")
        a(f"s_lshl_b32 s{sT[0]}, s{sJ}, 2"); a(f"s_add_u32 s{sT[0]}, s{sT[0]}, s{sW}")
        a(f"s_mul_i32 s{s4}, s{sT[0]}, 61440"); a(f"s_add_u32 s{s4}, s{s4}, {WS_W4F}")
        def mk(dst, s, i):
            def f():
                a(f"buffer_load_dwordx4 {dst}, v{self.vL16}, {srd(SWS)}, s{s} offen offset:{(i&3)*1024} sc1")
                if (i & 3) == 3: a(f"s_add_u32 s{s}, s{s}, 4096")
            return f
        self.mkload = mk
        for i in range(25): self.fill.append(mk(vr(self.W3 + 4 * i, 4), s3, i))
        for i in range(60): self.fill.append(mk(ar(4 * i, 4), s4, i))

    def red_setup(self):
        a = self.a; V = self.V; t = self.t
        self.vAo = V.alloc("vAo"); self.vRW = V.alloc("vRW"); self.vRR = V.alloc("vRR"); self.vRR2 = V.alloc("vRR2")
        self.vX = V.alloc("vX"); self.vX2 = V.alloc("vX2")
        a(f"v_lshlrev_b32 v{t[1]}, 9, v{self.vG4}"); a(f"v_lshl_add_u32 v{self.vAo}, v{self.vL15}, 4, v{t[1]}")
        a(f"v_mul_u32_u24 v{t[1]}, {RED_R}, v{self.vL15}"); a(f"v_lshl_add_u32 v{t[1]}, v{self.vG4}, 4, v{t[1]}")
        a(f"s_mul_i32 s{sT[0]}, s{sW}, {RED_W}"); a(f"s_add_u32 s{sT[0]}, s{sT[0]}, {L_S3[0]}"); a(f"v_add_u32 v{self.vRW}, s{sT[0]}, v{t[1]}")
        r8, c = t[2], t[3]
        a(f"v_and_b32 v{r8}, 7, v0"); a(f"v_lshrrev_b32 v{c}, 3, v0")
        a(f"s_lshl_b32 s{sT[0]}, s{sW}, 3"); a(f"v_add_u32 v{t[1]}, s{sT[0]}, v{r8}"); a(f"v_mul_u32_u24 v{t[1]}, {RED_R}, v{t[1]}")
        a(f"v_add_u32 v{t[1]}, {L_S3[0]}, v{t[1]}")
        a(f"v_lshl_add_u32 v{self.vRR}, v{c}, 5, v{t[1]}")
        a(f"v_lshl_add_u32 v{self.vRR2}, v{c}, 3, v{t[1]}"); a(f"v_add_u32 v{self.vRR2}, 256, v{self.vRR2}")
        self.scr = L_S3[0]
        a(f"v_mul_u32_u24 v{t[1]}, 1280, v{r8}"); a(f"v_lshl_add_u32 v{self.vX}, v{c}, 4, v{t[1]}")
        a(f"v_lshl_add_u32 v{self.vX2}, v{c}, 2, v{t[1]}"); a(f"v_add_u32 v{self.vX2}, 128, v{self.vX2}")
        self.sXO = sF[15]; self.sRB32 = sF[16]
        a(f"s_lshl_b32 s{self.sRB32}, s{sG}, 2"); a(f"s_lshl_b32 s{sT[0]}, s{self.sRH}, 1"); a(f"s_add_u32 s{self.sRB32}, s{self.sRB32}, s{sT[0]}")
        a(f"s_lshl_b32 s{sT[0]}, s{self.sRB32}, 5"); a(f"s_lshl_b32 s{sT[1]}, s{sW}, 3"); a(f"s_add_u32 s{sT[0]}, s{sT[0]}, s{sT[1]}")
        a(f"s_mul_i32 s{self.sXO}, s{sT[0]}, 1280"); a(f"s_mul_i32 s{sT[0]}, s{self.sCB8}, 160"); a(f"s_add_u32 s{self.sXO}, s{self.sXO}, s{sT[0]}")
        self.FO = V.alloc("FO"); self.vH = V.alloc("vH"); self.vH2 = V.alloc("vH2"); self.vS2 = V.alloc("vS2")
        FA, vH, vH2, vS2 = self.FO, self.vH, self.vH2, self.vS2
        a(f"v_bfe_u32 v{t[1]}, v0, 1, 2"); a(f"v_lshlrev_b32 v{t[1]}, 11, v{t[1]}")
        a(f"v_and_b32 v{t[2]}, 1, v0"); a(f"v_lshl_add_u32 v{t[1]}, v{t[2]}, 3, v{t[1]}")
        a(f"s_lshl_b32 s{sT[0]}, s{sW}, 13"); a(f"s_lshl_b32 s{sT[1]}, s{self.sWG0}, 7"); a(f"s_add_u32 s{sT[0]}, s{sT[0]}, s{sT[1]}")
        a(f"s_lshl_b32 s{sT[1]}, s{self.sRH}, 4"); a(f"s_add_u32 s{sT[0]}, s{sT[0]}, s{sT[1]}")
        a(f"v_add_u32 v{FA}, s{sT[0]}, v{t[1]}")
        a(f"v_and_b32 v{t[1]}, 7, v0"); a(f"v_lshlrev_b32 v{t[1]}, 4, v{t[1]}"); a(f"v_lshrrev_b32 v{t[2]}, 3, v0")
        a(f"v_lshl_add_u32 v{vH}, v{t[2]}, 9, v{t[1]}")
        a(f"v_lshrrev_b32 v{t[3]}, 5, v0"); a(f"v_lshl_add_u32 v{vH2}, v{t[3]}, 9, v{t[1]}"); a(f"v_and_b32 v{t[2]}, 3, v{t[2]}")
        a(f"v_lshl_add_u32 v{vH2}, v{t[2]}, 2, v{vH2}"); a(f"v_add_u32 v{vH2}, 4096, v{vH2}")
        a(f"v_lshlrev_b32 v{vS2}, 2, v{t[1]}"); a(f"v_and_b32 v{t[2]}, 1, v{self.vG4}"); a(f"v_lshl_add_u32 v{vS2}, v{t[2]}, 2, v{vS2}")

    def a_loads(self, nk, AF, sA):
        a = self.a
        for k in range(nk):
            for rt in range(2):
                a(f"buffer_load_dwordx4 {vr(AF+(k*2+rt)*4,4)}, v{self.vAo}, {srd(SWS)}, s{sA} offen offset:{rt*256+(k&1)*2048} sc1")
            if k & 1: a(f"s_add_u32 s{sA}, s{sA}, 4096")

    def ks_mfma(self, nk, wreg, AF, ACC):
        for k in range(nk):
            for rt in range(2):
                for tt in range(5):
                    D = vr(ACC + (rt * 5 + tt) * 4, 4)
                    self.E(f"v_mfma_f32_16x16x32_bf16 {D}, {wreg(k*5+tt)}, {vr(AF+(k*2+rt)*4,4)}, {'0' if k == 0 else D}")

    def set_scratch(self, scratch):
        d = scratch - self.scr
        if d:
            for r in (self.vRW, self.vRR, self.vRR2):
                self.a(f"v_add_u32 v{r}, {d & 0xffffffff:#x}, v{r}")
        self.scr = scratch

    def red_write(self, ACC):
        for rt in range(2):
            for tt in range(5):
                self.a(f"ds_write_b128 v{self.vRW}, {vr(ACC+(rt*5+tt)*4,4)} offset:{rt*16*RED_R+tt*64}")

    def red_read(self, ACC, R, T, src4, src1):
        a = self.a
        for d in range(4):
            a(f"v_lshlrev_b32 v{T+2*d}, 16, v{src4+d}"); a(f"v_and_b32 v{T+2*d+1}, 0xffff0000, v{src4+d}")
        a(f"v_lshlrev_b32 v{T+8}, 16, v{src1}"); a(f"v_and_b32 v{T+9}, 0xffff0000, v{src1}")
        a("s_waitcnt lgkmcnt(0)")
        a("s_barrier")
        for s in range(4):
            a(f"ds_read_b128 {vr(ACC+8*s,4)}, v{self.vRR} offset:{s*RED_W}")
            a(f"ds_read_b128 {vr(ACC+8*s+4,4)}, v{self.vRR} offset:{s*RED_W+16}")
            a(f"ds_read_b64 {vr(ACC+32+2*s,2)}, v{self.vRR2} offset:{s*RED_W}")
        for s in range(4):
            dst = R if s == 3 else T
            for i in range(0, 8, 2):
                a(f"v_pk_add_f32 {vr(dst+i,2)}, {vr(T+i,2)}, {vr(ACC+8*s+i,2)}")
            a(f"v_pk_add_f32 {vr(dst+8,2)}, {vr(T+8,2)}, {vr(ACC+32+2*s,2)}")

    def p3(self):
        a = self.a; V = self.V; t = self.t; o = self.o
        FA, vH, vH2, vS2 = self.FO, self.vH, self.vH2, self.vS2
        ACC = V.alloc("acc3", 40); AF = V.alloc("AF3", 40); R = V.alloc("R3", 10); T = V.alloc("T3", 10)
        sA = [sF[0], sF[1]]; sH = sF[2]; sS = sF[3]
        print("fill left at P3 start:", len(self.fill), file=sys.stderr)
        assert len(self.fill) <= 60
        self.poll_issue(FA)
        a(f"s_mul_i32 s{sH}, s{self.sRB32}, {OH_RB}")
        a(f"s_mul_i32 s{sT[0]}, s{sW}, {20*512}"); a(f"s_add_u32 s{sA[0]}, s{sH}, s{sT[0]}"); a(f"s_add_u32 s{sA[0]}, s{sA[0]}, {WS_O}")
        a(f"s_add_u32 s{sA[1]}, s{sA[0]}, {OH_RB}")
        a(f"s_mul_i32 s{sT[0]}, s{self.sCB8}, 5120"); a(f"s_add_u32 s{sH}, s{sH}, s{sT[0]}")
        a(f"s_lshl_b32 s{sT[0]}, s{sW}, 7"); a(f"s_add_u32 s{sH}, s{sH}, s{sT[0]}"); a(f"s_add_u32 s{sH}, s{sH}, {WS_H}")
        a(f"s_lshl_b32 s{sS}, s{self.sRB32}, 11"); a(f"s_lshl_b32 s{sT[1]}, s{sW}, 9")
        a(f"s_add_u32 s{sS}, s{sS}, s{sT[1]}"); a(f"s_lshl_b32 s{sT[1]}, s{self.sCB8}, 3"); a(f"s_add_u32 s{sS}, s{sS}, s{sT[1]}")
        a(f"s_add_u32 s{sS}, s{sS}, {WS_ST2}")
        self.p4_setup()
        self.flag(5, tag='O1')
        self.poll_check(FA, 4)
        self.stamp('oseen0')
        self.a_loads(5, AF, sA[0])
        self.drain_fill(o.get('burst3', 8))
        def final(hf):
            HK = self.HK[hf]
            for d in range(4): a(f"v_cvt_pk_bf16_f32 v{HK+d}, v{R+2*d}, v{R+2*d+1}")
            a(f"v_cvt_pk_bf16_f32 v{self.HK2+hf}, v{R+8}, v{R+9}")
            a(f"buffer_store_dwordx4 {vr(HK,4)}, v{vH}, {srd(SWS)}, s{sH} offen sc1")
            a(f"buffer_store_dword v{self.HK2+hf}, v{vH2}, {srd(SWS)}, s{sH} offen sc1")
            a(f"v_pk_mul_f32 {vr(T,2)}, {vr(R,2)}, {vr(R,2)}")
            a(f"v_pk_add_f32 {vr(T+2,2)}, {vr(R,2)}, {vr(R+2,2)}")
            for d in range(1, 5):
                a(f"v_pk_fma_f32 {vr(T,2)}, {vr(R+2*d,2)}, {vr(R+2*d,2)}, {vr(T,2)}")
                if d > 1: a(f"v_pk_add_f32 {vr(T+2,2)}, {vr(T+2,2)}, {vr(R+2*d,2)}")
            a(f"v_add_f32 v{R}, v{T+2}, v{T+3}"); a(f"v_add_f32 v{T}, v{T}, v{T+1}")
            a(f"v_permlane16_swap_b32 v{R}, v{T}")
            a(f"v_add_f32 v{R}, v{R}, v{T}")
            a(f"v_add_f32_dpp v{R}, v{R}, v{R} row_ror:8 row_mask:0xf bank_mask:0xf")
            a(f"v_mov_b32 v{T}, v{R}")
            a(f"v_permlane32_swap_b32 v{R}, v{T}")
            a(f"v_add_f32 v{R}, v{R}, v{T}")
            a("s_mov_b64 exec, 0x00ff00ff")
            a(f"buffer_store_dword v{R}, v{vS2}, {srd(SWS)}, s{sS} offen sc1", tag=f'H{hf}')
            a("s_mov_b64 exec, -1")
            if hf == 0:
                a(f"s_add_u32 s{sH}, s{sH}, {OH_RB}"); a(f"s_add_u32 s{sS}, s{sS}, 2048")
        wr = lambda f: vr(self.W3 + 4 * f, 4)
        self.ks_mfma(5, wr, AF, ACC)
        self.red_write(ACC)
        self.poll_issue(FA)
        self.red_read(ACC, R, T, self.HK[0], self.HK2)
        final(0)
        self.stamp('p3_0')
        self.set_scratch(L_S3[1])
        self.poll_try(5, "L_p3slow")
        q0 = list(a.vmq)
        self.a_loads(5, AF, sA[1])
        self.flag(6, tag='H0')
        a("s_branch L_p3join")
        a("L_p3slow:")
        a.vmq = list(q0)
        self.flag(6, tag='H0')
        self.poll(FA, 5)
        self.a_loads(5, AF, sA[1])
        a("L_p3join:")
        self.stamp('oseen1')
        self.drain_fill(o.get('burst3b', 8))
        self.ks_mfma(5, wr, AF, ACC)
        self.red_write(ACC)
        self.red_read(ACC, R, T, self.HK[1], self.HK2 + 1)
        final(1)
        self.stamp('p3_1')
        V.rel("acc3", "AF3", "R3", "T3", "FO", "vH", "vH2", "vS2", "W3")

    def p4_setup(self):
        a = self.a; V = self.V; t = self.t
        self.FH = V.alloc("FH"); self.vSt = V.alloc("vSt"); self.vGs = V.alloc("vGs"); self.FG = V.alloc("FG")
        a(f"v_lshrrev_b32 v{t[1]}, 2, v0"); a(f"v_lshlrev_b32 v{t[1]}, 11, v{t[1]}"); a(f"v_and_b32 v{t[2]}, 3, v0")
        a(f"v_lshl_add_u32 v{t[1]}, v{t[2]}, 3, v{t[1]}"); a(f"s_lshl_b32 s{sT[0]}, s{self.sWG0}, 7"); a(f"v_add_u32 v{self.FH}, s{sT[0]}, v{t[1]}")
        a(f"v_and_b32 v{t[1]}, 0x1fff, v{t[1]}"); a(f"s_lshl_b32 s{sT[1]}, s{sW}, 13"); a(f"s_add_u32 s{sT[0]}, s{sT[0]}, s{sT[1]}")
        a(f"v_add_u32 v{self.FG}, s{sT[0]}, v{t[1]}")
        a(f"v_lshrrev_b32 v{t[1]}, 1, v{self.vG4}"); a(f"v_and_b32 v{t[2]}, 1, v{self.vG4}")
        a(f"v_lshl_add_u32 v{t[3]}, v{t[2]}, 4, v{self.vL15}")
        a(f"v_lshl_add_u32 v{self.vSt}, v{t[1]}, 6, v{t[3]}"); a(f"v_lshlrev_b32 v{self.vSt}, 6, v{self.vSt}")
        a(f"v_mul_u32_u24 v{self.vGs}, {2*G_RB}, v{t[1]}"); a(f"v_lshl_add_u32 v{self.vGs}, v{t[3]}, 4, v{self.vGs}")
        self.sHD = [sF[4], sF[5]]; self.sHM = sF[6]; self.sST = sF[7]; self.sGS = sF[8]; self.sGA = sF[9]
        a(f"s_lshl_b32 s{sT[2]}, s{sG}, 2"); a(f"s_and_b32 s{sT[0]}, s{sW}, 2"); a(f"s_add_u32 s{sT[2]}, s{sT[2]}, s{sT[0]}")
        a(f"s_mul_i32 s{sT[2]}, s{sT[2]}, {OH_RB}"); a(f"s_and_b32 s{sT[1]}, s{sW}, 1"); a(f"s_lshl_b32 s{sT[1]}, s{sT[1]}, 10")
        a(f"s_add_u32 s{sT[2]}, s{sT[2]}, s{sT[1]}"); a(f"s_add_u32 s{self.sHD[0]}, s{sT[2]}, {WS_H}"); a(f"s_add_u32 s{self.sHD[1]}, s{self.sHD[0]}, {OH_RB}")
        a(f"s_mul_i32 s{self.sHM}, s{sT[0]}, 20480"); a(f"s_add_u32 s{self.sHM}, s{self.sHM}, s{sT[1]}")
        a(f"s_lshl_b32 s{self.sST}, s{sG}, 13"); a(f"s_add_u32 s{self.sST}, s{self.sST}, {WS_ST2}")
        a(f"s_lshl_b32 s{sT[0]}, s{sG}, 2"); a(f"s_mul_i32 s{sT[0]}, s{sT[0]}, {G_RB}")
        a(f"s_lshl_b32 s{sT[1]}, s{sJ}, 2"); a(f"s_add_u32 s{sT[1]}, s{sT[1]}, s{sW}"); a(f"s_mul_i32 s{sT[1]}, s{sT[1]}, 1536")
        a(f"s_add_u32 s{sT[0]}, s{sT[0]}, s{sT[1]}"); a(f"s_add_u32 s{self.sGS}, s{sT[0]}, {WS_G}")
        a(f"s_mul_i32 s{self.sGA}, s{self.sRB32}, {G_RB}")
        a(f"s_mul_i32 s{sT[0]}, s{sW}, {48*512}"); a(f"s_add_u32 s{self.sGA}, s{self.sGA}, s{sT[0]}"); a(f"s_add_u32 s{self.sGA}, s{self.sGA}, {WS_G}")

    def p4(self):
        a = self.a; V = self.V; t = self.t; E = self.E; o = self.o
        FA = self.FH
        CS = V.alloc("cs4", 12); ON = V.alloc("on4", 4); BP = V.alloc("BP", 2); BA = V.alloc("BA")
        ACC = [V.alloc("acc4a", 48), V.alloc("acc4b", 48)]; HF = [V.alloc("HF0", 16), V.alloc("HF1", 16)]
        SP = V.alloc("SP", 16); B3 = [V.alloc("B3a", 12), V.alloc("B3b", 12)]; GP = V.alloc("GP", 12); TT = V.alloc("TT", 8)
        vHB = V.alloc("vHB", 2)
        self.drain_fill()
        a("s_cmp_eq_u32 s2, 0"); a("s_cbranch_scc0 L_nb1")
        a(f"s_lshl_b32 s{sT[0]}, s{sW}, 13"); a(f"v_lshl_add_u32 v{BA}, v0, 7, s{sT[0]}")
        a.raw(f"buffer_load_dwordx2 {vr(BP,2)}, v{BA}, {srd(SWS)}, 0 offen sc1")
        a("L_nb1:")
        self.poll_issue(FA)
        for i in range(4): a(f"v_mov_b32 v{ON+i}, 0x3f803f80")
        self.at(o.get('hflag', 700), lambda: self.flag(7, tag='H1'))
        for k in range(20):
            for tt in range(3):
                D = vr(CS + 4 * tt, 4)
                E(f"v_mfma_f32_16x16x32_bf16 {D}, {ar((k*3+tt)*4,4)}, {vr(ON,4)}, {'0' if k == 0 else D}")
        self.flush_acts()
        self.poll_check(FA, 6)
        self.stamp('hseen0')
        def hdma(hf, k):
            def f():
                if (k & 1) == 0: a(f"s_add_u32 m0, s{self.sHM}, {L_H[hf] + k*2048}")
                a(f"buffer_load_dwordx4 v{self.vL16}, {srd(SWS)}, s{self.sHD[hf]} offen offset:{(k&1)*2048} sc1 lds", tag=f'HD{hf}_{k}')
                if k & 1: a(f"s_add_u32 s{self.sHD[hf]}, s{self.sHD[hf]}, 4096")
            return f
        def stld(hf):
            for i in range(4):
                a(f"buffer_load_dwordx4 {vr(SP+4*i,4)}, v{self.vSt}, {srd(SWS)}, s{self.sST} offen offset:{hf*2048+i*16} sc1")
        for k in range(20): hdma(0, k)()
        stld(0)
        a("s_cmp_eq_u32 s2, 0"); a("s_cbranch_scc0 L_nb2")
        self.poll_check(BA, 2, P=BP)
        a("L_nb2:")
        def stats(hf):
            b = B3[hf]; o_ = []
            for i in range(1, 8):
                o_.append(f"v_add_f32 v{SP}, v{SP}, v{SP+2*i}"); o_.append(f"v_add_f32 v{SP+1}, v{SP+1}, v{SP+2*i+1}")
            o_ += [f"v_mul_f32 v{b}, {f32(-1/640):#x}, v{SP}", f"v_mul_f32 v{SP+1}, {f32(1/640):#x}, v{SP+1}",
                   f"v_fma_f32 v{SP+1}, -v{b}, v{b}, v{SP+1}", f"v_add_f32 v{b+8}, {f32(1e-5):#x}, v{SP+1}",
                   f"v_rsq_f32 v{SP}, v{b+8}"]
            for qq in (0, 2):
                for i in range(1, 4): o_.append(f"v_mov_b32 v{b+4*qq+i}, v{b+4*qq}")
            for i in range(4): o_.append(f"v_mul_f32 v{b+4+i}, {f32(-LOG2E):#x}, v{SP}")
            for qq in (0, 2, 1): o_ += self.tr4(b + 4 * qq)
            return o_
        def epilogue(hf, pk):
            b = B3[hf]; o_ = []
            for tt in range(3):
                for rp in range(2):
                    ds = [(ACC[hf] + ((2 * rp + x) * 3 + tt) * 4, 2 * rp + x, TT + 2 * x + 4 * ((tt * 2 + rp) & 1)) for x in range(2)]
                    if pk:
                        sel = lambda rt: ("op_sel:[0,1,0] op_sel_hi:[1,1,1]" if rt & 1 else "op_sel_hi:[1,0,1]")
                        sel2 = lambda rt: ("op_sel:[0,1]" if rt & 1 else "op_sel_hi:[1,0]")
                        sel3 = lambda rt: ("op_sel:[0,1,1]" if rt & 1 else "op_sel_hi:[1,0,0]")
                        for d, rt, T in ds:
                            for i in (0, 2): o_.append(f"v_pk_fma_f32 {vr(d+i,2)}, {vr(CS+4*tt+i,2)}, {vr(b+(rt&2),2)}, {vr(d+i,2)} {sel(rt)}")
                        for d, rt, T in ds: o_.append(f"v_pk_mul_f32 {vr(T,2)}, {vr(d,2)}, {vr(b+4+(rt&2),2)} {sel2(rt)}")
                        for d, rt, T in ds:
                            for i in range(2): o_.append(f"v_exp_f32 v{T+i}, v{T+i}")
                        for d, rt, T in ds: o_.append(f"v_pk_mul_f32 {vr(d,2)}, {vr(d,2)}, {vr(d+2,2)}")
                        for d, rt, T in ds: o_.append(f"v_pk_fma_f32 {vr(T,2)}, {vr(T,2)}, {vr(b+8+(rt&2),2)}, {vr(b+8+(rt&2),2)} {sel3(rt)}")
                        for d, rt, T in ds:
                            for i in range(2): o_.append(f"v_rcp_f32 v{T+i}, v{T+i}")
                        for d, rt, T in ds: o_.append(f"v_pk_mul_f32 {vr(d,2)}, {vr(d,2)}, {vr(T,2)}")
                    else:
                        for d, rt, T in ds:
                            for i in range(4): o_.append(f"v_fma_f32 v{d+i}, v{b+rt}, v{CS+4*tt+i}, v{d+i}")
                        for d, rt, T in ds:
                            for i in range(2): o_.append(f"v_mul_f32 v{T+i}, v{b+4+rt}, v{d+i}")
                        for d, rt, T in ds:
                            for i in range(2): o_.append(f"v_exp_f32 v{T+i}, v{T+i}")
                        for d, rt, T in ds:
                            for i in range(2): o_.append(f"v_mul_f32 v{d+i}, v{d+i}, v{d+2+i}")
                        for d, rt, T in ds:
                            for i in range(2): o_.append(f"v_fma_f32 v{T+i}, v{T+i}, v{b+8+rt}, v{b+8+rt}")
                        for d, rt, T in ds:
                            for i in range(2): o_.append(f"v_rcp_f32 v{T+i}, v{T+i}")
                        for d, rt, T in ds:
                            for i in range(2): o_.append(f"v_mul_f32 v{d+i}, v{d+i}, v{T+i}")
                    for d, rt, T in ds: o_.append(f"v_cvt_pk_bf16_f32 v{GP+4*tt+rt}, v{d}, v{d+1}")
                o_.append(('tr', tt))
            res = []; pend = []
            for x in o_:
                if isinstance(x, tuple): pend.append([6, x[1]]); continue
                res.append(x)
                for p in pend: p[0] -= 1
                while pend and pend[0][0] <= 0:
                    res += trst(hf, pend.pop(0)[1])
            for p in pend: res += trst(hf, p[1])
            return res
        def trst(hf, tt):
            def st():
                a(f"buffer_store_dwordx4 {vr(GP+4*tt,4)}, v{self.vGs}, {srd(SWS)}, s{self.sGS} offen offset:{tt*512} sc1", tag=f'G{hf}')
                self.clk += 8
                if tt == 2 and hf == 0:
                    a(f"s_add_u32 s{self.sGS}, s{self.sGS}, {G_RB}")
                    self.at(o.get('gflag', 1000), lambda: self.flag(8, tag='G0'))
            return self.tr4(GP + 4 * tt) + [st]
        def stream(hf, extra):
            m = []
            def rdH(k, b):
                return [f"ds_read_b128 {vr(HF[b]+4*rt,4)}, v{vHB+(rt>>1)} offset:{k*2048+(rt&1)*256}" for rt in range(4)]
            for k in range(20):
                b = k & 1
                if k in extra: m += extra[k]
                if k == 0 or (hf == 0 and k in stages): m += rdH(k, b)
                nxt = rdH(k + 1, b ^ 1) if (k + 1 < 20 and not (hf == 0 and (k + 1) in stages)) else []
                for rt in range(4):
                    for tt in range(3):
                        D = vr(ACC[hf] + (rt * 3 + tt) * 4, 4)
                        m.append(f"v_mfma_f32_16x16x32_bf16 {D}, {ar((k*3+tt)*4,4)}, {vr(HF[b]+4*rt,4)}, {'0' if k == 0 else D}")
                        if tt == 0 and nxt: m.append(nxt.pop(0))
                        if hf == 1 and rt == 3: m.append(self.mkload(ar((k * 3 + tt) * 4, 4), self.s5, k * 3 + tt))
            return m
        stages = o.get('stages', (0, 6, 12))
        a(f"v_add_u32 v{vHB}, {L_H[0]}, v{self.vAo}"); a(f"v_add_u32 v{vHB+1}, {L_H[0]+40960}, v{self.vAo}")
        ex = {}
        for i, k0 in enumerate(stages):
            k1 = (stages[i + 1] if i + 1 < len(stages) else 20) - 1
            def w(k1=k1, k0=k0):
                a.wait_vm_tag(f'HD0_{k1}'); a("s_barrier")
                if k0 == 0:
                    self.stamp('hin0')
                    a(f"s_or_b32 s{sT[0]}, s2, s{sW}"); a("s_cbranch_scc1 L_nb3")
                    a(f"s_add_u32 s{sT[0]}, s{sE}, 16"); a(f"v_mov_b32 v{BA}, s{sT[0]}"); a(f"s_mov_b32 s{sT[0]}, {WS_EPOCH}")
                    a("s_mov_b64 exec, 1")
                    a.raw(f"buffer_store_dword v{BA}, off, {srd(SWS)}, s{sT[0]} sc1")
                    a("s_mov_b64 exec, -1")
                    a("L_nb3:")
            ex.setdefault(k0, []).append(w)
        kp = o.get('hb_poll', 3)
        ex.setdefault(kp, []).append(lambda: self.poll_issue(FA))
        def hb_go():
            self.poll_check(FA, 7)
            self.stamp('hseen1')
            for k in range(20): self.fill.append(hdma(1, k))
            self.fill_start(o.get('fp4', 90))
        ex.setdefault(max(kp + 4, stages[-1]), []).append(hb_go)
        side = []
        ex.setdefault(stages[-1] + 1, []).append(lambda: side.extend(stats(0) + [lambda: stld(1)]))
        self.weave(stream(0, ex), side)
        for x in side: (x() if callable(x) else E(x))
        self.drain_fill(); self.fill_on = False
        self.stamp('p4m0')
        a(f"v_add_u32 v{vHB}, {L_H[1]}, v{self.vAo}"); a(f"v_add_u32 v{vHB+1}, {L_H[1]+40960}, v{self.vAo}")
        a.wait_vm_tag('HD1_19'); a("s_barrier")
        self.stamp('hin1')
        side = epilogue(0, False) + stats(1)
        self.weave(stream(1, {}), side)
        for x in side: (x() if callable(x) else E(x))
        self.flush_acts()
        self.stamp('p4m1')
        self.poll_issue(self.FG)
        for x in epilogue(1, True): (x() if callable(x) else E(x))
        self.stamp('p4_1')
        V.rel("cs4", "on4", "BP", "BA", "FH", "vSt", "vGs", "vHB", "acc4a", "acc4b", "HF0", "HF1", "SP", "B3a", "B3b", "GP", "TT")

    def tr4(self, R):
        return [f"v_permlane32_swap_b32 v{R}, v{R+2}", f"v_permlane32_swap_b32 v{R+1}, v{R+3}",
                f"v_permlane16_swap_b32 v{R}, v{R+1}", f"v_permlane16_swap_b32 v{R+2}, v{R+3}"]

    def p5(self):
        a = self.a; V = self.V; t = self.t; o = self.o
        FA = self.FG
        ACC = V.alloc("acc5", 40); AF = V.alloc("AF5", 96); R = V.alloc("R5", 10); T = V.alloc("T5", 10)
        sA = [self.sGA, sF[0]]
        a(f"s_add_u32 s{sA[1]}, s{sA[0]}, {G_RB}")
        self.set_scratch(L_S5[0])
        self.poll_try(8, "L_p5slow")
        q0 = list(a.vmq)
        self.a_loads(12, AF, sA[0])
        self.flag(9, tag='G1')
        a("s_branch L_p5join")
        a("L_p5slow:")
        a.vmq = list(q0)
        self.flag(9, tag='G1')
        self.poll(FA, 8)
        self.a_loads(12, AF, sA[0])
        a("L_p5join:")
        self.stamp('gseen0')
        wr = lambda f: ar(4 * f, 4)
        def final(hf):
            for d in range(5): a(f"v_cvt_pk_bf16_f32 v{T+d}, v{R+2*d}, v{R+2*d+1}")
            a(f"s_add_u32 s{sT[0]}, s{self.sXO}, {hf*32*1280}")
            a(f"buffer_store_dwordx4 {vr(T,4)}, v{self.vX}, {srd(SOUT)}, s{sT[0]} offen")
            a(f"buffer_store_dword v{T+4}, v{self.vX2}, {srd(SOUT)}, s{sT[0]} offen")
        self.at(o.get('gb_poll', 1300), lambda: self.poll_issue(FA))
        self.ks_mfma(12, wr, AF, ACC)
        self.flush_acts()
        self.red_write(ACC)
        self.stamp('p5m0')
        self.poll_check(FA, 9)
        self.stamp('gseen1')
        self.a_loads(12, AF, sA[1])
        self.red_read(ACC, R, T, self.HK[0], self.HK2)
        final(0)
        self.set_scratch(L_S5[1])
        self.stamp('p5_0')
        self.ks_mfma(12, wr, AF, ACC)
        self.red_write(ACC)
        self.red_read(ACC, R, T, self.HK[1], self.HK2 + 1)
        final(1)
        self.stamp('p5_1')

    def build(self):
        a = self.a
        self.prologue()
        self.p1()
        phases = [self.p2, self.p3, self.p4, self.p5]
        for i, ph in enumerate(phases):
            if self.stop <= i + 1: break
            ph()
        a("L_finish:")
        if self.ts:
            a("s_waitcnt vmcnt(0)")
            self.stamp('end')
            a(f"s_lshl_b32 s{sT[0]}, s2, 10"); a(f"s_lshl_b32 s{sT[1]}, s{sW}, 8"); a(f"s_add_u32 s{sT[0]}, s{sT[0]}, s{sT[1]}")
            a(f"s_add_u32 s{sT[0]}, s{sT[0]}, {WS_TS}"); a(f"v_lshlrev_b32 v1, 2, v0")
            a(f"buffer_store_dword v255, v1, {srd(SWS)}, s{sT[0]} offen")
        a("L_end:")
        a("s_endpgm")
        a("L_codeend:")
        from emit import Ins
        a.ins[self.pf_pos] = Ins(f"s_min_u32 s{sT[0]}, s{sT[0]}, (L_codeend - L_pf - 520)")
        a.finalize()
        hdr = ["; generated by gen/gen.py -- fused preLN sliding-window attention + SwiGLU block",
               "; @launch grid=(256,1,1) block=(256,1,1) lds=163840",
               '.amdgcn_target "amdgcn-amd-amdhsa--gfx950"', ".text", f".globl {NAME}", ".p2align 8",
               f".type {NAME},@function", f"{NAME}:"]
        ftr = ['.section .rodata,"a"', ".p2align 6", f".amdhsa_kernel {NAME}", "  .amdhsa_next_free_vgpr 512",
               "  .amdhsa_next_free_sgpr 102", "  .amdhsa_accum_offset 256", "  .amdhsa_group_segment_fixed_size 0",
               "  .amdhsa_kernarg_size 80", "  .amdhsa_user_sgpr_count 2", "  .amdhsa_user_sgpr_kernarg_segment_ptr 1",
               "  .amdhsa_system_sgpr_workgroup_id_x 1", ".end_amdhsa_kernel"]
        return "\n".join(hdr) + "\n" + a.text() + "\n".join(ftr) + "\n"

if __name__ == "__main__":
    import argparse
    ap = argparse.ArgumentParser()
    ap.add_argument("out"); ap.add_argument("--stop", type=int, default=99); ap.add_argument("--ts", action="store_true")
    ap.add_argument("--map1", default="row"); ap.add_argument("--opt", action="append", default=[])
    o = ap.parse_args()
    opts = {}
    for kv in o.opt:
        k, v = kv.split('='); opts[k] = eval(v)
    g = Gen(stop=o.stop, ts=o.ts, map1=o.map1, opts=opts)
    txt = g.build()
    open(o.out, "w").write(txt)
    if o.ts: open(o.out + ".ts", "w").write(" ".join(g.tsnames))
```
